```python
import torch

def _softmax(x, axis=-1):
    return torch.softmax(x, dim=axis)
def _gelu(x):
    return torch.nn.functional.gelu(x, approximate="tanh")
def _silu(x):
    return torch.nn.functional.silu(x)
def _sigmoid(x):
    return torch.sigmoid(x)
def _layernorm(x, axis=-1, eps=1e-5):
    m = x.mean(dim=axis, keepdim=True)
    v = x.var(dim=axis, keepdim=True, unbiased=False)
    return (x - m) / torch.sqrt(v + eps)
def _scatter_add(tgt, idx, src, axis=0):
    return tgt.clone().index_add_(axis, idx, src)
def _segment_sum(src, seg, n):
    out = torch.zeros((n,) + src.shape[1:], dtype=src.dtype)
    return out.index_add_(0, seg, src)
def _pad(x, pw):
    flat = tuple(v for pair in reversed(pw) for v in pair)
    return torch.nn.functional.pad(x, flat)

kernel_name = 'interleave_layers__ssm_conv_h3__dense_activation_gelu__prompt'

def setup_inputs():

    _w = (lambda a: (lambda t: t.to(torch.bfloat16) if t.is_floating_point() else t)(torch.as_tensor(a)))
    def _A_setup():
        B, S, D = 1, 2048, 512
        ks = 4
        return {
            "q": _w((lambda *s: torch.randn(*s, dtype=torch.bfloat16) * 0.05)(B, S, D)),
            "k": _w((lambda *s: torch.randn(*s, dtype=torch.bfloat16) * 0.2)(B, S, D)),
            "v": _w((lambda *s: torch.randn(*s, dtype=torch.bfloat16) * 0.2)(B, S, D)),
            "shift_k": _w((lambda *s: torch.randn(*s, dtype=torch.bfloat16) * 0.2)(D, ks) * 0.5),
            "ssm_k": _w((lambda *s: torch.randn(*s, dtype=torch.bfloat16) * 0.4)(D, S) * (1.0 / S ** 0.5)),
            "ssm_D": _w((lambda *s: torch.randn(*s, dtype=torch.bfloat16) * 0.2)(D)),
        }
    _A_in = _A_setup()

    def _B_setup():
        B, S, D, F = 1, 2048, 512, 1376
        return {
            "x": _w((lambda *s: torch.randn(*s, dtype=torch.bfloat16) * 0.05)(B, S, D)),
            "w1": _w((lambda *s: torch.randn(*s, dtype=torch.bfloat16) * 0.4)(D, F) * (D ** -0.5)),
            "b1": _w((lambda *s: torch.randn(*s, dtype=torch.bfloat16) * 12.8)(F) * 0.01),
            "w2": _w((lambda *s: torch.randn(*s, dtype=torch.bfloat16) * 0.1)(F, D) * (F ** -0.5)),
            "b2": _w((lambda *s: torch.randn(*s, dtype=torch.bfloat16) * 0.8)(D) * 0.01),
        }
    _B_in = _B_setup()

    return {
        "A_q": _A_in["q"],
        "A_k": _A_in["k"],
        "A_v": _A_in["v"],
        "A_shift_k": _A_in["shift_k"],
        "A_ssm_k": _A_in["ssm_k"],
        "A_ssm_D": _A_in["ssm_D"],
        "B_x": _B_in["x"],
        "B_w1": _B_in["w1"],
        "B_b1": _B_in["b1"],
        "B_w2": _B_in["w2"],
        "B_b2": _B_in["b2"],
    }

def reference(A_q, A_k, A_v, A_shift_k, A_ssm_k, A_ssm_D, B_x, B_w1, B_b1, B_w2, B_b2):
    def _A_ref(q, k, v, shift_k, ssm_k, ssm_D):
        B, S, D = q.shape
        ks = shift_k.shape[-1]
        k_pad = _pad(k, ((0, 0), (ks - 1, 0), (0, 0)))
        k_shift = torch.zeros_like(k)
        for t in range(ks):
            k_shift = k_shift + k_pad[:, t:t + S, :] * shift_k[:, ks - 1 - t][None, None, :]
        kv = k_shift * v
        L = 2 * S
        kv_pad = _pad(kv, ((0, 0), (0, S), (0, 0)))
        kf_pad = _pad(ssm_k, ((0, 0), (0, S)))
        kv_f = (lambda x, axes=(-2,-1): torch.fft.rfft2(x.float(), dim=axes))(kv_pad[:, None, :, :], axes=(1, 2))
        kf_f = (lambda x, axes=(-2,-1): torch.fft.rfft2(x.float(), dim=axes))(kf_pad[:, None, :], axes=(1, 2))
        kf_f = (lambda x, *d: x.permute(*d))(kf_f, 1, 2, 0)
        y_f = kv_f * kf_f[None, :, :, :]
        y = (lambda x, s, axes=(-2,-1): torch.fft.irfft2(x, s=s, dim=axes).to(torch.bfloat16))(y_f, (1, L), axes=(1, 2))[:, 0, :S, :]
        y = y + kv * ssm_D[None, None, :]
        return q * y

    def _B_ref(x, w1, b1, w2, b2):
        h = torch.einsum("bsd,df->bsf", x, w1) + b1
        h = _gelu(h)
        return torch.einsum("bsf,fd->bsd", h, w2) + b2

    x = A_q
    x = x + _A_ref(_layernorm(x, axis=-1), A_k, A_v, A_shift_k, A_ssm_k, A_ssm_D)
    x = x + _B_ref(_layernorm(x, axis=-1), B_w1, B_b1, B_w2, B_b2)
    x = x + _A_ref(_layernorm(x, axis=-1), A_k, A_v, A_shift_k, A_ssm_k, A_ssm_D)
    x = x + _B_ref(_layernorm(x, axis=-1), B_w1, B_b1, B_w2, B_b2)
    return x
```

```python
import re

def _regs(tok):
    tok = tok.strip()
    neg = tok.lstrip('-')
    m = re.fullmatch(r'abs\((.*)\)', neg)
    if m: neg = m.group(1)
    neg = neg.strip('|')
    m = re.fullmatch(r'([vas])(\d+)', neg)
    if m: return [(m.group(1), int(m.group(2)))]
    m = re.fullmatch(r'([vas])\[(\d+):(\d+)\]', neg)
    if m: return [(m.group(1), i) for i in range(int(m.group(2)), int(m.group(3)) + 1)]
    if neg in ('vcc',): return [('x', 'vcc')]
    if neg in ('exec',): return [('x', 'exec')]
    if neg == 'm0': return [('x', 'm0')]
    return []

def _split(ops):
    out, depth, cur = [], 0, ''
    for ch in ops:
        if ch in '[(': depth += 1
        if ch in '])': depth -= 1
        if ch == ',' and depth == 0:
            out.append(cur.strip()); cur = ''
        else: cur += ch
    if cur.strip(): out.append(cur.strip())
    return out

TRANS = ('v_exp_f32', 'v_log_f32', 'v_rcp_f32', 'v_rsq_f32', 'v_sqrt_f32', 'v_sin_f32', 'v_cos_f32')

class I:
    __slots__ = ('text', 'mn', 'kind', 'rd', 'wr', 'passes', 'srcC', 'srcAB', 'tag', 'wide', 'sdata', 'dpp', 'discard', 'cost', 'isdot')
    def __init__(self, text, tag=None, discard=False):
        self.text = text; self.tag = tag; self.discard = discard
        t = text.split(None, 1)
        mn = self.mn = t[0]
        rest = t[1] if len(t) > 1 else ''
        ops = _split(rest)
        mods = ''
        if ops:
            p = ops[-1].split(None, 1)
            if len(p) > 1 and not ops[-1].startswith('hwreg') and not mn.startswith('s_waitcnt'):
                ops[-1] = p[0]; mods = p[1]
        R = [_regs(o) for o in ops]
        rd, wr = [], []
        self.passes = 0; self.srcC = []; self.srcAB = []; self.wide = False; self.sdata = []; self.dpp = False; self.isdot = False
        base = re.sub(r'_(e32|e64|dpp|sdwa)$', '', mn)
        if mn.startswith('v_mfma'):
            self.kind = 'mfma'; self.passes = 8 if '32x32' in mn else 4
            wr = R[0]; self.srcAB = R[1] + R[2]; self.srcC = R[3]; rd = self.srcAB + self.srcC
        elif mn.startswith('v_'):
            self.kind = 'trans' if base in TRANS else 'valu'
            if base.startswith('v_cmp'):
                wr = R[0]; rd = sum(R[1:], [])
            elif base.startswith('v_permlane') and 'swap' in base:
                wr = R[0] + R[1]; rd = R[0] + R[1]; self.kind = 'perm'
            else:
                wr = R[0]; rd = sum(R[1:], [])
                if base in ('v_fmac_f32', 'v_dot2c_f32_bf16', 'v_writelane_b32'): rd = rd + R[0]
                if base == 'v_cndmask_b32' and len(ops) == 3: rd = rd + [('x', 'vcc')]
            if mn.endswith('_dpp') or 'row_' in mods or 'quad_perm' in mods:
                self.dpp = True; rd = rd + R[0]
            if base.startswith('v_dot2'): self.isdot = True
            if base in ('v_readfirstlane_b32', 'v_readlane_b32'): self.kind = 'rdlane'
        elif mn.startswith('ds_'):
            self.kind = 'ds'
            if mn.startswith('ds_read') or mn.startswith('ds_bpermute') or mn.startswith('ds_swizzle'):
                wr = R[0]; rd = sum(R[1:], [])
            else:
                rd = sum(R, [])
        elif mn.startswith('buffer_') or mn.startswith('global_'):
            self.kind = 'vmem'
            if mn in ('buffer_wbl2', 'buffer_inv'): pass
            elif 'load' in mn:
                if re.search(r'\blds\b', mods):
                    rd = sum(R, []) + [('x', 'm0')]; self.kind = 'dma'
                else:
                    wr = R[0]; rd = sum(R[1:], [])
            else:
                rd = sum(R, [])
                self.sdata = R[0] if mn.startswith('buffer_') else R[1]
                if 'x4' in mn or 'x3' in mn: self.wide = True
        elif mn.startswith('s_load') or mn.startswith('s_memtime') or mn.startswith('s_memrealtime'):
            self.kind = 'smem'; wr = R[0]; rd = sum(R[1:], [])
        elif mn in ('s_waitcnt', 's_nop', 's_barrier', 's_endpgm', 's_sleep', 's_setprio'):
            self.kind = mn[2:]
        elif mn.startswith('s_cbranch') or mn == 's_branch':
            self.kind = 'branch'
        elif mn.startswith('s_'):
            self.kind = 'salu'
            if mn.startswith('s_cmp') or mn.startswith('s_bitcmp'): rd = sum(R, [])
            else:
                wr = R[0]; rd = sum(R[1:], [])
                if 'saveexec' in mn: wr = wr + [('x', 'exec')]
        else:
            raise ValueError('unknown instr ' + text)
        self.rd = set(rd); self.wr = set(wr)
        self.cost = 2 if self.kind == 'trans' else 1
    def __repr__(self): return self.text

class Label:
    def __init__(self, name): self.name = name; self.kind = 'label'; self.text = name + ':'
class Raw:
    def __init__(self, text): self.text = text; self.kind = 'raw'
class Ctl:
    def __init__(self, what, arg=None): self.what = what; self.arg = arg; self.kind = 'ctl'; self.text = ''

VALUISH = ('valu', 'trans', 'perm', 'rdlane')

def states_needed(p, c):
    n = 0
    pk, ck = p.kind, c.kind
    if pk in VALUISH:
        vw = {r for r in p.wr if r[0] in 'va'}
        sw = {r for r in p.wr if r[0] in 'sx'}
        if vw:
            hit = vw & c.rd
            if hit:
                if ck == 'mfma': n = max(n, 2)
                if ck == 'perm' or (ck in VALUISH and c.dpp): n = max(n, 2)
                if ck == 'rdlane': n = max(n, 1)
                if pk == 'trans' and ck in VALUISH and ck != 'trans': n = max(n, 1)
                if pk == 'trans' and ck in ('ds', 'vmem', 'dma'): n = max(n, 1)
            if p.isdot and (vw & (c.rd | c.wr)):
                if c.kind in VALUISH and c.isdot and c.mn == p.mn:
                    toks = _split(c.text.split(None, 1)[1])
                    ab = set(_regs(toks[1]) + _regs(toks[2]))
                    if vw & ab: n = max(n, 3)
                else: n = max(n, 3)
        if sw:
            if sw & c.rd:
                if ck in VALUISH or ck == 'mfma': n = max(n, 4 if ck == 'rdlane' or c.mn.startswith('v_writelane') else 2)
                if ck in ('vmem', 'dma'): n = max(n, 5)
                if ck in ('salu', 'smem'): n = max(n, 1)
    if pk == 'mfma':
        big = {4: 8, 8: 12}[p.passes]
        D = p.wr
        if ck == 'mfma':
            if D & set(c.srcAB): n = max(n, big)
            if D & set(c.srcC):
                if not (set(c.srcC) == D and c.passes == p.passes): n = max(n, {4: 6, 8: 10}[p.passes])
            elif D & c.wr:
                n = max(n, big)
        elif ck in VALUISH or ck in ('ds', 'vmem', 'dma'):
            if D & (c.rd | c.wr): n = max(n, big)
        if ck in VALUISH and set(p.srcC) & c.wr: n = max(n, {4: 3, 8: 7}[p.passes])
    if pk == 'vmem' and p.wide and set(p.sdata) & c.wr:
        n = max(n, 2 if ck in VALUISH or ck == 'mfma' else 1)
    if pk == 'salu' and ('x', 'm0') in p.wr and ck == 'dma': n = max(n, 1)
    return n

class Prog:
    def __init__(self):
        self.items = []
    def __call__(self, text, **kw):
        for line in text.strip().split('\n'):
            line = line.split(';')[0].strip()
            if not line: continue
            if line.endswith(':'): self.items.append(Label(line[:-1]))
            else: self.items.append(I(line, **kw))
        return self
    def add(self, it):
        if isinstance(it, str): self(it)
        elif isinstance(it, (list, tuple)):
            for x in it: self.add(x)
        else: self.items.append(it)
    def raw(self, t): self.items.append(Raw(t))
    def label(self, n): self.items.append(Label(n))
    def waitvm(self, tag): self.items.append(Ctl('waitvm', tag))
    def waitlgkm(self): self('s_waitcnt lgkmcnt(0)')
    def save(self, name): self.items.append(Ctl('save', name))
    def restore(self, name): self.items.append(Ctl('restore', name))
    def merge(self, names): self.items.append(Ctl('merge', names))
    def assume(self, vm=None): self.items.append(Ctl('assume', vm))

    def _waits(self):
        out = []
        vm = []
        lg = []
        saved = {}
        def emit_wait(nvm=None, nlg=None):
            nonlocal vm, lg
            parts = []
            if nvm is not None and nvm < len(vm):
                parts.append('vmcnt(%d)' % min(nvm, 63)); vm = vm[len(vm) - min(nvm, 63):] if nvm else []
            if nlg is not None and nlg < len(lg):
                if any(s for _, s in lg): nlg = 0
                k = min(nlg, 15)
                parts.append('lgkmcnt(%d)' % k); lg = lg[len(lg) - k:] if k else []
            if parts: out.append(I('s_waitcnt ' + ' '.join(parts)))
        for it in self.items:
            k = it.kind
            if k == 'ctl':
                if it.what == 'waitvm':
                    idx = [i for i, e in enumerate(vm) if e[1] == it.arg or it.arg == '*']
                    if idx: emit_wait(nvm=len(vm) - 1 - max(idx))
                elif it.what == 'save': saved[it.arg] = (list(vm), list(lg))
                elif it.what == 'restore': vm, lg = list(saved[it.arg][0]), list(saved[it.arg][1])
                elif it.what == 'assume': vm, lg = [], []
                elif it.what == 'merge':
                    sts = [saved[n] for n in it.arg]
                    def mrg(qs, dummy):
                        pre = 0
                        while all(len(q) > pre for q in qs) and all(q[pre] is qs[0][pre] for q in qs): pre += 1
                        for q in qs:
                            for e in q[pre:]:
                                assert not e[0] or (len(e) > 2 and e[2]), 'pending load across merge: %s' % (e,)
                        return qs[0][:pre] + [dummy] * min(len(q) - pre for q in qs)
                    vm = mrg([s[0] for s in sts], (set(), None, True))
                    lg = mrg([s[1] for s in sts], (set(), False))
                continue
            if k in ('label', 'raw'):
                out.append(it); continue
            if k == 'waitcnt':
                m = re.search(r'vmcnt\((\d+)\)', it.text)
                if m:
                    n = int(m.group(1)); vm = vm[len(vm) - n:] if n and n < len(vm) else ([] if n == 0 else vm)
                m = re.search(r'lgkmcnt\((\d+)\)', it.text)
                if m:
                    n = int(m.group(1)); lg = lg[len(lg) - n:] if n and n < len(lg) else ([] if n == 0 else lg)
                out.append(it); continue
            touch = it.rd | it.wr
            nvm = nlg = None
            for i, e in enumerate(vm):
                if e[0] & touch and not (e[2] and not (e[0] & it.rd) and k in ('vmem',)):
                    nvm = len(vm) - 1 - i
            for i, e in enumerate(lg):
                if e[0] & touch: nlg = len(lg) - 1 - i
            emit_wait(nvm, nlg)
            out.append(it)
            if k in ('vmem', 'dma'):
                vm.append((set(it.wr), it.tag, it.discard))
                assert len(vm) <= 63, 'too many outstanding vm ops at ' + it.text
            elif k == 'ds': lg.append((set(it.wr), False))
            elif k == 'smem':
                lg.append((set(it.wr), True))
            if len(lg) > 15 and k in ('ds', 'smem'):
                pass
        return out

    def _nops(self, items):
        out = []
        hist = []
        def drain():
            need = 0
            for p, d in hist:
                if p.kind == 'mfma': need = max(need, {4: 8, 8: 12}[p.passes] - d)
                elif p.kind in VALUISH: need = max(need, (5 if any(r[0] in 'sx' for r in p.wr) else 3) - d)
                elif p.kind == 'vmem' and p.wide: need = max(need, 2 - d)
                elif p.kind == 'salu' and ('x', 'm0') in p.wr: need = max(need, 1 - d)
            return need
        def pad(n):
            nonlocal hist
            while n > 0:
                k = min(n, 16); out.append(I('s_nop %d' % (k - 1))); n -= k
                hist = [(p, d + k) for p, d in hist]
        for it in items:
            if it.kind == 'raw': out.append(it); continue
            if it.kind == 'label':
                pad(drain()); hist = []; out.append(it); continue
            if it.kind == 'branch':
                pad(drain() - 1)
            need = 0
            for p, d in hist: need = max(need, states_needed(p, it) - d)
            pad(need)
            out.append(it)
            step = int(it.text.split()[1]) + 1 if it.kind == 'nop' else 1
            hist = [(p, d + step) for p, d in hist if d + step < 20]
            hist.append((it, 0))
        return out

    def render(self):
        items = self._nops(self._waits())
        self.final = items
        return '\n'.join(it.text if it.kind in ('label', 'raw') else ' ' + it.text for it in items)

def interleave(main, fill, cap, start=0, lead=0):
    out, fi = [], 0
    for i, m in enumerate(main):
        out.append(m)
        if i < start: continue
        c = cap
        while fi < len(fill):
            f = fill[fi]
            cost = getattr(f, 'cost', 0)
            if cost > c: break
            out.append(f); c -= cost; fi += 1
    out.extend(fill[fi:])
    return out
```

```python
import sys
from asmdsl import *
NAME = "interleave_layers__ssm_conv_h3__dense_activation_gelu__prompt"
PROF = '--prof' in sys.argv
SPIN = 0x40000
S0_TMO = 64

WS_EPOCH = 0; WS_PRE = 0x1000; WS_FL = 0x10000; WS_KVT = 0x100000; WS_Y = 0x500000; WS_XNS = 0x700000
WS_PART = 0x1000000; WS_PROF = 0x3000000; WS_SIZE = 0x3100000
L_HC = 0; HC_CS = 4160; HC_CH = 8 * HC_CS; L_XN = 0; XN_RS = 1056; L_RB = 0
L_U = 67584; U_CH = 4608; L_YT = L_U; YT_RS = 1040; L_RED0 = L_U; RED_RS = 2080
L_TB = 76800; L_H = 76800; H_RS = 400; H_HALF = 32 * H_RS
L_ST = 102400; ST_W = 15360; L_RED1 = L_ST
LDS_BYTES = 163840
sW, sXG, sIDX, sLB, sTAG, sTAG0, sJ, sG = 3, 4, 5, 6, 7, 8, 9, 10
R_K, R_V, R_T, R_H, R_WS, R_W1, R_W2, R_Q = 44, 48, 52, 56, 60, 64, 68, 72
sXO, sXI0, sXI1, sPS, sPL0, sPL1, sFL, sLAY, sST = 76, 77, 78, 79, 80, 81, 82, 83, 84
sSPIN = 85; sT0, sT1, sT2, sT3 = 86, 87, 88, 89
sSELLO, sSELHI, sHIM, sC0, sC1 = 96, 97, 98, 99, 100
def srd(r): return 's[%d:%d]' % (r, r + 3)
vX_ = [100, 104]; vY_ = [108, 112]; vB2 = 116; vB1 = 120
vXF, vHW, vHR, vPS, vPL, vRW, vRR, vL16, vJNK, vPROF = 132, 133, 134, 135, 136, 137, 138, 139, 140, 141
vFLG = 142
def vr(a, n): return 'v[%d:%d]' % (a, a + n - 1) if n > 1 else 'v%d' % a
def w1reg(t, s, half=None):
    fi = 3 * s + t
    k, b = ('a', 176 + 4 * fi) if fi < 20 else ('v', 144 + 4 * (fi - 20))
    if half is None: return '%s[%d:%d]' % (k, b, b + 3)
    return '%s[%d:%d]' % (k, b + 2 * half, b + 2 * half + 1)
def w2reg(T, s, half=None):
    b = 4 * (11 * T + s)
    if half is None: return 'a[%d:%d]' % (b, b + 3)
    return 'a[%d:%d]' % (b + 2 * half, b + 2 * half + 1)

P = Prog()
nstamp = [1]
def stamp(p=None):
    if not PROF: return
    n = nstamp[0]; nstamp[0] += 1
    P('s_memtime s[90:91]\ns_waitcnt lgkmcnt(0)\nv_writelane_b32 v%d, s90, %d' % (vPROF, n))
def mksrd(r, ptr, nbytes):
    P('s_mov_b32 s%d, s%d\ns_mov_b32 s%d, s%d\ns_mov_b32 s%d, 0x%x\ns_mov_b32 s%d, 0x20000' % (r, ptr, r + 1, ptr + 1, r + 2, nbytes, r + 3))
def barrier():
    P('s_waitcnt lgkmcnt(0)\ns_barrier')
uid = [0]
def L(n):
    uid[0] += 1; return 'L%s_%d' % (n, uid[0])

def prologue():
    P('''s_cmp_ge_u32 s2, 256
s_cbranch_scc1 Lend
s_load_dwordx16 s[16:31], s[0:1], 0
s_load_dwordx8 s[32:39], s[0:1], 64
s_load_dwordx4 s[40:43], s[0:1], 96''')
    if PROF:
        P('s_memrealtime s[92:93]\ns_memtime s[90:91]\nv_mov_b32 v%d, 0\ns_waitcnt lgkmcnt(0)\nv_writelane_b32 v%d, s92, 0\nv_writelane_b32 v%d, s90, 1' % (vPROF, vPROF, vPROF))
        nstamp[0] = 2
    P(f'''s_getpc_b64 s[12:13]
v_lshlrev_b32 v2, 7, v0
v_lshrrev_b32 v3, 6, v0
s_and_b32 s{sXG}, s2, 7
s_lshr_b32 s{sIDX}, s2, 3
v_readfirstlane_b32 s{sW}, v3
s_getreg_b32 s11, hwreg(HW_REG_XCC_ID, 0, 3)
v_and_b32 v1, 63, v0
s_lshl_b32 s{sLB}, s{sXG}, 5
s_add_u32 s{sLB}, s{sLB}, s{sIDX}
s_and_b32 s{sJ}, s{sIDX}, 7
s_lshr_b32 s{sG}, s{sLB}, 3
v_lshlrev_b32 v{vL16}, 4, v1''')
    P(f'''s_lshl_b32 s14, s{sIDX}, 16
s_lshl_b32 s15, s{sXG}, 7
s_add_u32 s14, s14, s15
v_lshrrev_b32 v7, 3, v0
v_and_b32 v8, 7, v0
v_lshlrev_b32 v5, 11, v7
v_lshl_add_u32 v5, v8, 4, v5
v_add_u32 v5, s14, v5
v_add_u32 v6, 0x400, v5
v_add_u32 v4, 0xfffffc00, v5
v_add_u32 v3, 0xfffff800, v5
v_add_u32 v9, 0xfffff400, v5
s_lshl_b32 s15, s{sXG}, 9
v_lshl_add_u32 v10, v8, 6, s15''')
    P(f'''v_mul_u32_u24 v11, {8*33*4}, v8
v_lshlrev_b32 v7, 2, v7
v_sub_u32 v11, v11, v7
v_add_u32 v11, {L_TB + 31*4}, v11
s_waitcnt lgkmcnt(0)''')
    P('s_load_dword s%d, s[42:43], 0' % sTAG)
    mksrd(R_K, 18, 0x200000); mksrd(R_V, 20, 0x200000); mksrd(R_T, 22, 4096)
    for d, off in enumerate([9, 3, 4, 5, 6]):
        P(f'buffer_load_dwordx4 {vr(12+4*d,4)}, v{off}, {srd(R_K)}, 0 offen')
    P(f'buffer_load_dwordx4 v[32:35], v5, {srd(R_V)}, 0 offen\nbuffer_load_dwordx4 v[36:39], v6, {srd(R_V)}, 0 offen')
    for i in range(4):
        P(f'buffer_load_dwordx4 {vr(40+4*i,4)}, v10, {srd(R_T)}, 0 offen offset:{16*i}')
    mksrd(R_WS, 42, WS_SIZE)
    P(f'global_load_dword v{vJNK}, v2, s[12:13]', discard=True)
    P(f'v_add_u32 v2, 0x8000, v2')
    P(f'global_load_dword v{vJNK}, v2, s[12:13]', discard=True)
    lh, lj = L('h0'), L('j0')
    P(f's_cmp_ge_u32 s{sW}, 2')
    P.save('p0')
    P(f's_cbranch_scc1 {lh}')
    P(f'''s_lshl_b32 s14, s{sLB}, 14
s_lshl_b32 s15, s{sW}, 13
s_add_u32 s14, s14, s15
s_add_u32 s{sT0}, s14, {WS_KVT}
s_add_u32 s{sT3}, s{sT0}, 4096''')
    for i in range(8):
        P(f'buffer_load_dwordx4 {vr(56+4*i,4)}, v{vL16}, {srd(R_WS)}, s{sT0 if i < 4 else sT3} offen offset:{1024*(i&3)} sc1', discard=True)
    P(f'''v_mov_b32 v88, 0
v_mov_b32 v89, 0
s_mul_i32 s14, s{sW}, {U_CH}
s_add_u32 s14, s14, {L_U + 4096}
v_lshl_add_u32 v7, v1, 3, s14
ds_write_b64 v7, v[88:89]''')
    P.save('p0a')
    P(f's_branch {lj}')
    P.label(lh); P.restore('p0')
    P(f'''s_lshl_b32 s14, s{sLB}, 13
s_lshl_b32 s15, s{sW}, 12
s_add_u32 s14, s14, s15
s_sub_u32 s14, s14, 0x2000
s_add_u32 s{R_H}, s24, s14
s_addc_u32 s{R_H+1}, s25, 0
s_mov_b32 s{R_H+2}, 4096
s_mov_b32 s{R_H+3}, 0x20000
v_add_u32 v7, -16, v{vL16}
v_add_u32 v8, 1008, v{vL16}''')
    for i in range(4):
        lo = f'v7, {srd(R_H)}, 0 offen' if i == 0 else f'v8, {srd(R_H)}, 0 offen offset:{1024*(i-1)}'
        P(f'buffer_load_dwordx4 {vr(56+8*i,4)}, {lo}', discard=True)
        P(f'buffer_load_dwordx4 {vr(60+8*i,4)}, v{vL16}, {srd(R_H)}, 0 offen offset:{1024*i}', discard=True)
    P.save('p0b')
    P.label(lj); P.merge(['p0a', 'p0b'])
    P(f'''s_mov_b32 s{sSELLO}, 0x05040100
s_mov_b32 s{sSELHI}, 0x07060302
s_mov_b32 s{sHIM}, 0xffff0000''')

def kv_phase():
    stamp_after = True
    r = lambda d, m: 12 + 4 * d + m
    for m in range(4):
        T = 88
        for h, sel in enumerate((sSELLO, sSELHI)):
            b = T + 4 * h
            P(f'''v_perm_b32 v{b}, v{r(0,m)}, v{r(1,m)}, s{sel}
v_perm_b32 v{b+1}, v{r(1,m)}, v{r(2,m)}, s{sel}
v_perm_b32 v{b+2}, v{r(2,m)}, v{r(3,m)}, s{sel}
v_perm_b32 v{b+3}, v{r(3,m)}, v{r(4,m)}, s{sel}''')
        if m == 0: stamp()
        for h in range(2):
            b = T + 4 * h; i = 2 * m + h; a = 96 + 2 * h
            P(f'''v_dot2_f32_bf16 v{a}, v{b}, v{41+2*i}, 0
v_dot2_f32_bf16 v{a+1}, v{b+1}, v{41+2*i}, 0
v_dot2_f32_bf16 v{a}, v{b+2}, v{40+2*i}, v{a}
v_dot2_f32_bf16 v{a+1}, v{b+3}, v{40+2*i}, v{a+1}''')
        P(f'''v_lshlrev_b32 v2, 16, v{32+m}
v_lshlrev_b32 v3, 16, v{36+m}
v_and_b32 v8, s{sHIM}, v{32+m}
v_and_b32 v9, s{sHIM}, v{36+m}
v_pk_mul_f32 v[96:97], v[96:97], v[2:3]
v_pk_mul_f32 v[98:99], v[98:99], v[8:9]
v_cvt_pk_bf16_f32 v4, v97, v96
v_cvt_pk_bf16_f32 v7, v99, v98
ds_write_b32 v11, v4 offset:{(2*m)*132}
ds_write_b32 v11, v7 offset:{(2*m+1)*132}''')
    P(f'''s_add_u32 s{sTAG}, s{sTAG}, 8
s_and_b32 s{sTAG}, s{sTAG}, -8
s_or_b32 s{sTAG0}, s{sTAG}, s11''')
    P(f'''v_lshrrev_b32 v2, 4, v1
v_and_b32 v3, 15, v1
s_lshl_b32 s14, s{sW}, 4
v_add_u32 v2, s14, v2
v_mul_u32_u24 v4, 132, v2
v_lshl_add_u32 v4, v3, 3, v4
v_add_u32 v4, {L_TB}, v4
v_lshlrev_b32 v2, 13, v2
v_lshl_add_u32 v10, v3, 4, v2
s_lshl_b32 s14, s{sXG}, 19
s_sub_u32 s15, 31, s{sIDX}
s_lshl_b32 s15, s15, 8
s_add_u32 s14, s14, s15
s_add_u32 s{sT1}, s14, {WS_KVT}''')
    for i in range(4):
        P(f'v_mov_b32 v{13+4*i}, s{sTAG0}\nv_mov_b32 v{15+4*i}, s{sTAG0}')
    barrier()
    for i in range(4):
        P(f'ds_read_b32 v{12+4*i}, v4 offset:{i*4*132}\nds_read_b32 v{14+4*i}, v4 offset:{i*4*132+4}')
    kvt_stores('')
    stamp()

def kvt_stores(cc):
    P(f's_mov_b32 s{sT2}, s{sT1}')
    for i in range(4):
        P(f'buffer_store_dwordx4 {vr(12+4*i,4)}, v10, {srd(R_WS)}, s{sT2} offen{cc}')
        if i < 3: P(f's_add_u32 s{sT2}, s{sT2}, 0x8000')

def s0_phase():
    lh, lj, lp, lok, lsl, lsp = L('h1'), L('j1'), L('p1'), L('ok1'), L('sl1'), L('sp1')
    P(f's_mov_b32 s{sLAY}, 0')
    P(f's_cmp_ge_u32 s{sW}, 2')
    P.save('s0')
    P(f's_cbranch_scc1 {lh}')
    P(f's_mov_b32 s{sSPIN}, 0')
    def loads(cc):
        for i in range(8):
            P(f'buffer_load_dwordx4 {vr(56+4*i,4)}, v{vL16}, {srd(R_WS)}, s{sT0 if i < 4 else sT3} offen offset:{1024*(i&3)}{cc}')
        P('s_waitcnt vmcnt(0)')
    P.label(lp)
    loads(' sc1')
    P('v_min_u32 v2, v57, v59\nv_max_u32 v3, v57, v59')
    for i in range(1, 8):
        P(f'v_min3_u32 v2, v2, v{57+4*i}, v{59+4*i}\nv_max3_u32 v3, v3, v{57+4*i}, v{59+4*i}')
    P(f'''v_xor_b32 v2, s{sTAG0}, v2
v_xor_b32 v3, s{sTAG0}, v3
v_or_b32 v2, v2, v3
v_cmp_ne_u32 vcc, 0, v2
s_cbranch_vccz {lok}
s_add_u32 s{sSPIN}, s{sSPIN}, 1
s_cmp_lt_u32 s{sSPIN}, {S0_TMO}
s_cbranch_scc1 {lp}
s_mov_b32 s{sLAY}, 1''')
    P.label(lok)
    P.save('s0a')
    P(f's_branch {lj}')
    P.label(lh); P.restore('s0')
    P('s_waitcnt vmcnt(4)')
    P(f'''s_sub_u32 s14, s{sW}, 2
s_mul_i32 s14, s14, {HC_CH}
s_add_u32 s14, s14, {L_HC + 16}
v_add_u32 v2, s14, v{vL16}
v_and_b32 v3, 7, v1
v_mul_u32_u24 v3, {HC_CS}, v3
s_sub_u32 s14, s14, 16
v_add_u32 v3, s14, v3
v_mov_b32 v32, 0
v_mov_b32 v33, 0
v_mov_b32 v34, 0
v_mov_b32 v35, 0
ds_write_b128 v3, v[32:35]''')
    for i in range(4):
        d = 56 + 8 * i; e, g, f = (32, 38, 44) if i % 2 == 0 else (88, 94, 50)
        for k in range(6): P(f'v_alignbit_b32 v{e+k}, v{d+k+1}, v{d+k}, 16')
        for k in range(6): P(f'v_alignbit_b32 v{g+k}, v{d+k+2}, v{d+k+1}, 16')
        for k in range(6): P(f'v_mov_b32 v{f+k}, v{d+k+1}')
        src = {0: e, 1: f, 2: g, 3: d + 2, 4: e + 2, 5: f + 2, 6: g + 2, 7: d + 4}
        for c in range(8):
            P(f'ds_write_b128 v2, {vr(src[c],4)} offset:{c*HC_CS + 1024*i}')
    P.save('s0b')
    P.label(lj); P.merge(['s0a', 's0b'])
    P(f'''v_mov_b32 v2, {L_TB + 8448}
v_lshl_add_u32 v3, s{sW}, 2, v2
v_mov_b32 v4, s{sLAY}
ds_write_b32 v3, v4''')
    lw = L('nw')
    P(f's_cmp_ge_u32 s{sW}, 2\ns_cbranch_scc1 {lw}')
    u_write()
    P.label(lw)
    barrier()
    P(f'''ds_read_b64 v[4:5], v2
s_waitcnt lgkmcnt(0)
v_or_b32 v4, v4, v5
s_nop 0
v_readfirstlane_b32 s14, v4
s_cmp_lg_u32 s14, 0
s_cbranch_scc1 Lslow''')

def u_write():
    P(f's_mul_i32 s14, s{sW}, {U_CH}\ns_add_u32 s14, s14, {L_U}\nv_lshl_add_u32 v7, v1, 3, s14')
    for i in range(8):
        P(f'v_mov_b32 v{57+4*i}, v{58+4*i}')
    for i in range(8):
        P(f'ds_write_b64 v7, {vr(56+4*i,2)} offset:{512*i}')

def s0_slow():
    kvt_stores(' sc0 sc1')
    lp, lok, lw = L('sp'), L('sok'), L('sw')
    P(f's_cmp_ge_u32 s{sW}, 2\ns_cbranch_scc1 {lw}\ns_mov_b32 s{sSPIN}, 0')
    P.label(lp)
    for i in range(8):
        P(f'buffer_load_dwordx4 {vr(56+4*i,4)}, v{vL16}, {srd(R_WS)}, s{sT0 if i < 4 else sT3} offen offset:{1024*(i&3)} sc0 sc1')
    P('s_waitcnt vmcnt(0)\nv_mov_b32 v2, 0')
    for i in range(8):
        P(f'v_xor_b32 v3, s{sTAG}, v{57+4*i}\nv_xor_b32 v4, s{sTAG}, v{59+4*i}\nv_or3_b32 v2, v2, v3, v4')
    P(f'''v_cmp_lt_u32 vcc, 7, v2
s_cbranch_vccz {lok}
s_add_u32 s{sSPIN}, s{sSPIN}, 1
s_cmp_lt_u32 s{sSPIN}, {SPIN}
s_cbranch_scc1 {lp}''')
    P.label(lok)
    u_write()
    P.label(lw)
    P('s_waitcnt vmcnt(0)')
    barrier()
    P.assume()

def setup_ffn(slow):
    cc = ' sc0 sc1'
    xb = WS_XNS if slow else WS_KVT
    P(f'''s_lshl_b32 s14, s{sLB}, 14
s_lshl_b32 s15, s{sW}, 10
s_add_u32 s14, s14, s15
s_add_u32 s{sXO}, s14, {xb}
s_lshl_b32 s14, s{sG}, 17
s_lshl_b32 s15, s{sW}, 15
s_add_u32 s14, s14, s15
s_add_u32 s{sXI0}, s14, {xb}
s_add_u32 s{sXI1}, s{sXI0}, 0x4000
s_lshl_b32 s14, s{sG}, 19
s_lshl_b32 s15, s{sW}, 10
s_add_u32 s14, s14, s15
s_add_u32 s14, s14, {WS_PART}
s_lshl_b32 s15, s{sJ}, 12
s_add_u32 s{sPS}, s14, s15
s_lshl_b32 s15, s{sJ}, 15
s_add_u32 s{sPL0}, s14, s15
s_add_u32 s{sPL1}, s{sPL0}, 0x4000
s_lshl_b32 s14, s{sG}, 4
s_add_u32 s14, s14, s{sW}
s_lshl_b32 s14, s14, 7
s_add_u32 s{sFL}, s14, {WS_FL}
s_mul_i32 s14, s{sW}, {ST_W}
s_add_u32 s{sST}, s14, {L_ST}''')
    P('v_mov_b32 v2, -1\nv_mov_b32 v3, -1\nv_mov_b32 v4, -1\nv_mov_b32 v5, -1')
    P(f's_lshl_b32 s14, s{sLB}, 13\ns_lshl_b32 s15, s{sW}, 11\ns_add_u32 s14, s14, s15\ns_add_u32 s14, s14, {WS_Y}')
    P(f'buffer_store_dwordx4 v[2:5], v{vL16}, {srd(R_WS)}, s14 offen sc0 sc1', tag='clr')
    P(f'buffer_store_dwordx4 v[2:5], v{vL16}, {srd(R_WS)}, s14 offen offset:1024 sc0 sc1', tag='clr')
    P(f's_mov_b32 s14, s{sXO}')
    for i in range(4):
        P(f'buffer_store_dwordx4 v[2:5], v{vL16}, {srd(R_WS)}, s14 offen{cc if slow else ""}', tag='clr')
        if i < 3: P('s_add_u32 s14, s14, 0x1000')
    mksrd(R_Q, 16, 0x200000)
    P(f's_lshl_b32 s14, s{sLB}, 13\ns_lshl_b32 s15, s{sW}, 10\ns_add_u32 s14, s14, s15\ns_add_u32 s15, s14, 0x1000')
    P(f'buffer_load_dwordx4 {vr(vX_[0],4)}, v{vL16}, {srd(R_Q)}, s14 offen')
    P(f'buffer_load_dwordx4 {vr(vX_[1],4)}, v{vL16}, {srd(R_Q)}, s15 offen')
    mksrd(R_T, 36, 1024)
    P(f'buffer_load_dwordx4 {vr(vB2,4)}, v{vL16}, {srd(R_T)}, 0 offen')
    mksrd(R_K, 32, 2752)
    P(f'''s_mul_i32 s14, s{sJ}, 352
s_mul_i32 s15, s{sW}, 96
s_add_u32 s14, s14, s15
v_lshrrev_b32 v6, 4, v1
v_lshl_add_u32 v6, v6, 3, s14''')
    for t in range(3):
        P(f'buffer_load_dwordx2 {vr(vB1+4*t+2,2)}, v6, {srd(R_K)}, 0 offen offset:{32*t}')
    P(f's_lshl_b32 s14, s{sLB}, 2\ns_load_dword s{sC0}, s[26:27], s14')
    mksrd(R_W1, 30, 512 * 2752); mksrd(R_W2, 34, 1376 * 1024)
    P(f'''v_and_b32 v7, 15, v1
v_lshrrev_b32 v8, 4, v1
v_and_b32 v9, 31, v1
v_lshrrev_b32 v10, 5, v1
v_mul_u32_u24 v{vXF}, {XN_RS}, v7
v_lshl_add_u32 v{vXF}, v8, 4, v{vXF}
v_mul_u32_u24 v{vHW}, {H_RS}, v7
v_lshl_add_u32 v{vHW}, v8, 3, v{vHW}
s_mul_i32 s14, s{sW}, 96
s_add_u32 s14, s14, {L_H}
v_add_u32 v{vHW}, s14, v{vHW}
v_mul_u32_u24 v{vHR}, {H_RS}, v9
v_lshl_add_u32 v{vHR}, v10, 4, v{vHR}
v_add_u32 v{vHR}, {L_H}, v{vHR}
v_lshrrev_b32 v11, 2, v9
v_lshlrev_b32 v{vPS}, 15, v11
v_and_b32 v11, 3, v9
v_lshl_add_u32 v{vPS}, v11, 5, v{vPS}
v_lshl_add_u32 v{vPS}, v10, 4, v{vPS}
v_lshlrev_b32 v{vPL}, 12, v8
v_lshl_add_u32 v{vPL}, v7, 4, v{vPL}
v_bfe_u32 v11, v1, 1, 2
v_mul_u32_u24 v{vRW}, {RED_RS}, v11
v_lshl_add_u32 v{vRW}, v10, 7, v{vRW}
v_bfe_u32 v11, v1, 3, 1
v_lshl_add_u32 v{vRW}, v11, 6, v{vRW}
v_and_b32 v11, 1, v1
v_lshl_add_u32 v{vRW}, v11, 5, v{vRW}
v_bfe_u32 v11, v1, 4, 1
v_lshl_add_u32 v{vRW}, v11, 4, v{vRW}
s_lshl_b32 s14, s{sW}, 9
s_add_u32 s14, s14, {L_RED0}
v_add_u32 v{vRW}, s14, v{vRW}
s_mul_i32 s14, s{sW}, {RED_RS}
s_add_u32 s14, s14, {L_RED0}
v_lshl_add_u32 v{vRR}, v1, 5, s14
v_and_b32 v11, 7, v1
v_lshlrev_b32 v{vFLG}, 2, v11''')

def pre_flag():
    P.waitvm('clr')
    P(f'''s_lshl_b32 s14, s{sLB}, 4
s_lshl_b32 s15, s{sW}, 2
s_add_u32 s14, s14, s15
s_add_u32 s14, s14, {WS_PRE}
v_mov_b32 v38, 0
v_mov_b32 v39, s{sTAG}
s_mov_b64 exec, 1
buffer_store_dword v39, v38, {srd(R_WS)}, s14 offen sc0 sc1
s_mov_b64 exec, -1''')

def touches():
    P(f'''s_mul_i32 s14, s{sIDX}, {344*128}
v_lshlrev_b32 v2, 7, v0
v_add_u32 v2, s14, v2
v_add_u32 v3, 0x8000, v2
v_cmp_gt_u32 vcc, 88, v0
v_mov_b32 v4, -1
s_nop 0
v_cndmask_b32 v3, v4, v3, vcc''')
    for r in (R_W1, R_W2):
        P(f'buffer_load_dword v{vJNK}, v2, {srd(r)}, 0 offen', discard=True)
        P(f'buffer_load_dword v{vJNK}, v3, {srd(r)}, 0 offen', discard=True)

def touch_part():
    P(f'''v_lshrrev_b32 v2, 3, v1
v_lshlrev_b32 v2, 12, v2
v_and_b32 v3, 7, v1
v_lshl_add_u32 v2, v3, 7, v2
s_add_u32 s14, s{sPL0}, 0x40000
v_and_b32 v3, 3, v1
v_lshlrev_b32 v3, 9, v3''')
    P(f'buffer_load_dword v{vJNK}, v2, {srd(R_WS)}, s{sPL0} offen sc1', discard=True)
    P(f'buffer_load_dword v{vJNK}, v2, {srd(R_WS)}, s14 offen sc1', discard=True)
    P(f'buffer_load_dword v{vJNK}, v3, {srd(R_WS)}, s{sFL} offen sc1', discard=True)

def conv():
    ACC = 2
    A0, B0 = 36, 68
    vA, vB = 34, 35
    P(f'''v_and_b32 v36, 7, v1
v_mul_u32_u24 v{vA}, {HC_CS}, v36
v_bfe_u32 v36, v1, 3, 1
v_lshrrev_b32 v37, 4, v1
v_add_u32 v36, v36, v37
v_lshl_add_u32 v{vA}, v36, 4, v{vA}
s_lshr_b32 s14, s{sW}, 1
s_and_b32 s15, s{sW}, 1
s_lshl_b32 s15, s15, 8
s_mul_i32 s12, s14, {HC_CH}
s_add_u32 s12, s12, s15
v_add_u32 v{vA}, s12, v{vA}
s_mul_i32 s12, s14, {U_CH}
s_add_u32 s12, s12, s15
s_add_u32 s12, s12, {L_U + 480}
v_lshlrev_b32 v{vB}, 4, v37
v_and_b32 v36, 15, v1
v_lshlrev_b32 v36, 5, v36
v_sub_u32 v{vB}, v{vB}, v36
v_add_u32 v{vB}, s12, v{vB}''')
    for rr in range(4):
        for a in range(8):
            P(f'ds_read_b128 {vr(A0+4*a,4)}, v{vA} offset:{512*a+64*rr}')
            P(f'ds_read_b128 {vr(B0+4*a,4)}, v{vB} offset:{3584-512*a+64*rr}')
        for s in range(8):
            for a in range(s + 1):
                for (aa, cc) in {(a, s), (s, a)}:
                    if aa + cc <= 7:
                        p = aa + cc
                        first = (rr == 0 and aa == 0) if False else None
                        P.add(('MF', aa, cc, rr))
    seen = set(); items = []
    for it in P.items:
        if isinstance(it, tuple):
            _, aa, cc, rr = it; p = aa + cc
            c = vr(ACC + 4 * p, 4) if p in seen else '0'
            seen.add(p)
            items.append(I(f'v_mfma_f32_16x16x32_bf16 {vr(ACC+4*p,4)}, {vr(A0+4*aa,4)}, {vr(B0+4*cc,4)}, {c}'))
        else: items.append(it)
    P.items = items

def conv_epilogue():
    ACC = 2
    P(f'''v_and_b32 v34, 15, v1
v_lshlrev_b32 v34, 6, v34
v_lshrrev_b32 v35, 4, v1
v_lshl_add_u32 v34, v35, 4, v34
s_lshl_b32 s14, s{sW}, 13
v_add_u32 v34, s14, v34
v_lshlrev_b32 v35, 4, v0
v_lshlrev_b32 v36, 3, v0
v_sub_u32 v36, {L_U + 4088 - 2048}, v36''')
    barrier()
    for p in range(8): P(f'ds_write_b128 v34, {vr(ACC+4*p,4)} offset:{1024*p}')
    barrier()
    P(f's_lshl_b32 s{sC1}, s{sC0}, 16\ns_and_b32 s{sC0}, s{sC0}, 0xffff0000')
    P(f's_lshl_b32 s14, s{sLB}, 13\ns_add_u32 s14, s14, {WS_Y}\ns_add_u32 s15, s14, 0x1000')
    for i in range(2):
        b = 40 + 24 * i
        for k in range(4): P(f'ds_read_b128 {vr(b+4*k,4)}, v35 offset:{8192*k+4096*i}')
        P(f'ds_read_b64 {vr(b+16,2)}, v36 offset:{2048-2048*i}')
        P(f'ds_read_b64 {vr(b+18,2)}, v36 offset:{2048-2048*i+U_CH}')
    for i in range(2):
        b = 40 + 24 * i
        for ch in range(2):
            a = b + 8 * ch; u = b + 16 + 2 * ch; sd = sC1 if ch == 0 else sC0
            P(f'''v_pk_add_f32 {vr(a,2)}, {vr(a,2)}, {vr(a+4,2)}
v_pk_add_f32 {vr(a+2,2)}, {vr(a+2,2)}, {vr(a+6,2)}
v_and_b32 v{a+4}, s{sHIM}, v{u+1}
v_lshlrev_b32 v{a+5}, 16, v{u+1}
v_and_b32 v{a+6}, s{sHIM}, v{u}
v_lshlrev_b32 v{a+7}, 16, v{u}''')
            for k in range(4): P(f'v_fmac_f32 v{a+k}, s{sd}, v{a+4+k}')
        for k in range(4): P(f'v_cvt_pk_bf16_f32 v{b+20+k}, v{b+k}, v{b+8+k}')
        for k in range(4): P(f'v_min_u32 v{b+20+k}, -2, v{b+20+k}')
        P(f'buffer_store_dwordx4 {vr(b+20,4)}, v35, {srd(R_WS)}, s{14+i} offen sc0 sc1', tag='y')

def wload_setup():
    P(f's_mul_i32 s14, s{sJ}, 352\ns_mul_i32 s15, s{sW}, 96\ns_add_u32 s14, s14, s15\ns_movk_i32 s15, 0x2aab')
    for i in range(3):
        P(f'''v_add_u32 v9, {64*i}, v1
v_mul_u32_u24 v10, s15, v9
v_lshrrev_b32 v10, 16, v10
v_mul_u32_u24 v11, 6, v10
v_sub_u32 v9, v9, v11
v_lshl_add_u32 v9, v9, 4, s14
v_cmp_gt_u32 vcc, 2752, v9
v_mul_u32_u24 v10, 2752, v10
v_add_u32 v10, v10, v9
v_mov_b32 v11, 0x7fffffff
v_cndmask_b32 v{2+i}, v11, v10, vcc''')
    P(f'''v_lshrrev_b32 v9, 4, v1
v_and_b32 v10, 15, v1
v_lshlrev_b32 v11, 2, v9
v_xor_b32 v10, v10, v11
v_lshlrev_b32 v5, 10, v9
v_lshl_add_u32 v5, v10, 4, v5
s_mul_i32 s14, s{sJ}, {176*1024}
s_lshl_b32 s15, s{sW}, 8
s_add_u32 s14, s14, s15
v_add_u32 v5, s14, v5''')
    P(f'''v_lshrrev_b32 v9, 4, v1
v_bfe_u32 v10, v1, 2, 2
v_lshl_add_u32 v9, v9, 3, v10
v_mul_u32_u24 v6, 96, v9
v_and_b32 v11, 3, v1
v_lshl_add_u32 v6, v11, 3, v6
v_add_u32 v6, s{sST}, v6''')
    for T in range(4):
        P(f'''v_bfe_u32 v9, v1, 4, 1
v_bfe_u32 v11, v1, 1, 1
v_lshl_add_u32 v9, v9, 1, v11
v_add_u32 v9, {4*T}, v9
v_lshlrev_b32 v11, 2, v10
v_xor_b32 v9, v9, v11
v_lshlrev_b32 v9, 4, v9
v_and_b32 v11, 1, v1
v_lshl_add_u32 v9, v11, 3, v9
v_lshrrev_b32 v11, 5, v1
v_lshl_add_u32 v11, v11, 3, v10
v_lshl_add_u32 v9, v11, 8, v9
v_add_u32 v{12+T}, s{sST}, v9''')

def w1_issue(s0, n):
    for s in range(s0, s0 + n):
        P(f's_mov_b32 s14, {s*32*2752}')
        for i in range(3):
            P(f's_add_u32 m0, s{sST}, {((s-s0)*3+i)*1024}')
            P(f'buffer_load_dwordx4 v{2+i}, {srd(R_W1)}, s14 offen lds', tag='w')
def w1_read(s0, n):
    for s in range(s0, s0 + n):
        for t in range(3):
            for h in range(2):
                P(f'ds_read_b64_tr_b16 {w1reg(t,s,h)}, v6 offset:{(s-s0)*3072 + h*384 + 32*t}')
def w2_issue(s0, n):
    for s in range(s0, s0 + n):
        for i in range(4):
            P(f's_mov_b32 s14, {(s*16+i*4)*1024}')
            P(f's_add_u32 m0, s{sST}, {((s-s0)*4+i)*1024}')
            P(f'buffer_load_dwordx4 v5, {srd(R_W2)}, s14 offen lds', tag='w')
def w2_read(s0, n):
    for s in range(s0, s0 + n):
        for T in range(4):
            for h in range(2):
                P(f'ds_read_b64_tr_b16 {w2reg(T,s,h)}, v{12+T} offset:{(s-s0)*4096 + h*1024}')
def wload_all():
    wload_setup()
    for s0, n in ((0, 5), (5, 5), (10, 5), (15, 1)):
        w1_issue(s0, n); P.waitvm('w'); w1_read(s0, n); P.waitlgkm()
    for s0, n in ((0, 3), (3, 3), (6, 3), (9, 2)):
        w2_issue(s0, n); P.waitvm('w'); w2_read(s0, n); P.waitlgkm()

def s1_phase():
    lp, lok, lq, lqk = L('pre'), L('preok'), L('y'), L('yok')
    P(f's_mov_b32 s{sSPIN}, 0\nv_lshlrev_b32 v2, 4, v0\ns_mov_b32 s14, {WS_PRE}')
    P.label(lp)
    P(f'''buffer_load_dwordx4 v[4:7], v2, {srd(R_WS)}, s14 offen sc1
s_waitcnt vmcnt(0)
v_xor_b32 v4, s{sTAG}, v4
v_xor_b32 v5, s{sTAG}, v5
v_xor_b32 v6, s{sTAG}, v6
v_xor_b32 v7, s{sTAG}, v7
v_or3_b32 v4, v4, v5, v6
v_or_b32 v4, v4, v7
v_cmp_ne_u32 vcc, 0, v4
s_cbranch_vccz {lok}
s_add_u32 s{sSPIN}, s{sSPIN}, 1
s_cmp_lt_u32 s{sSPIN}, {SPIN}
s_cbranch_scc1 {lp}''')
    P.label(lok)
    barrier()
    stamp()
    P(f'''v_lshrrev_b32 v3, 1, v0
v_lshlrev_b32 v2, 13, v3
v_and_b32 v12, 1, v0
v_lshl_add_u32 v2, v12, 4, v2
s_lshl_b32 s14, s{sLB}, 5
s_add_u32 s14, s14, {WS_Y}
s_add_u32 s15, s14, 0x100000
v_mul_u32_u24 v12, {4*YT_RS}, v12
v_lshl_add_u32 v12, v3, 2, v12
v_add_u32 v12, {L_YT}, v12
s_mov_b32 s{sSPIN}, 0''')
    P.label(lq)
    P(f'''buffer_load_dwordx4 v[4:7], v2, {srd(R_WS)}, s14 offen sc1
buffer_load_dwordx4 v[8:11], v2, {srd(R_WS)}, s15 offen sc1
s_waitcnt vmcnt(0)
v_max3_u32 v13, v4, v5, v6
v_max3_u32 v14, v7, v8, v9
v_max3_u32 v13, v13, v10, v11
v_max_u32 v13, v13, v14
v_cmp_eq_u32 vcc, -1, v13
s_cbranch_vccz {lqk}
s_add_u32 s{sSPIN}, s{sSPIN}, 1
s_cmp_lt_u32 s{sSPIN}, {SPIN}
s_cbranch_scc1 {lq}''')
    P.label(lqk)
    for i in range(2):
        for k in range(4): P(f'ds_write_b32 v12, v{4+4*i+k} offset:{k*YT_RS + 512*i}')
    P(f's_mul_i32 s14, s{sW}, {YT_RS}\ns_add_u32 s14, s14, {L_YT}\nv_add_u32 v12, s14, v{vL16}')
    barrier()
    P(f'ds_read_b128 {vr(vY_[0],4)}, v12\nds_read_b128 {vr(vY_[1],4)}, v12 offset:{4*YT_RS}')
    le = L('ep')
    P(f'''s_cmp_lg_u32 s2, 0
s_cbranch_scc1 {le}
s_cmp_lg_u32 s{sW}, 0
s_cbranch_scc1 {le}
v_mov_b32 v2, 0
v_mov_b32 v3, s{sTAG}
s_mov_b64 exec, 1
buffer_store_dword v3, v2, {srd(R_WS)}, 0 offen sc0 sc1
s_mov_b64 exec, -1''')
    P.label(le)
    P('s_waitcnt vmcnt(0) lgkmcnt(0)')

def unpack8(dst, src):
    for k in range(4):
        P(f'v_lshlrev_b32 v{dst+2*k}, 16, v{src+k}\nv_and_b32 v{dst+2*k+1}, s{sHIM}, v{src+k}')
def round_scalar(v):
    P(f'v_cvt_pk_bf16_f32 v{v}, v{v}, v{v}\nv_and_b32 v{v}, s{sHIM}, v{v}')
def stats(x, t):
    P(f'''v_pk_add_f32 {vr(t,2)}, {vr(x,2)}, {vr(x+2,2)}
v_pk_mul_f32 {vr(t+2,2)}, {vr(x,2)}, {vr(x,2)}
v_pk_add_f32 {vr(t+4,2)}, {vr(x+4,2)}, {vr(x+6,2)}
v_pk_fma_f32 {vr(t+2,2)}, {vr(x+2,2)}, {vr(x+2,2)}, {vr(t+2,2)}
v_pk_add_f32 {vr(t,2)}, {vr(t,2)}, {vr(t+4,2)}
v_pk_fma_f32 {vr(t+2,2)}, {vr(x+4,2)}, {vr(x+4,2)}, {vr(t+2,2)}
v_add_f32 v{t}, v{t}, v{t+1}
v_pk_fma_f32 {vr(t+2,2)}, {vr(x+6,2)}, {vr(x+6,2)}, {vr(t+2,2)}
v_add_f32 v{t+1}, v{t+2}, v{t+3}''')
    for mod in ('quad_perm:[1,0,3,2]', 'quad_perm:[2,3,0,1]', 'row_half_mirror', 'row_mirror'):
        P(f'v_add_f32_dpp v{t}, v{t}, v{t} {mod} row_mask:0xf bank_mask:0xf\nv_add_f32_dpp v{t+1}, v{t+1}, v{t+1} {mod} row_mask:0xf bank_mask:0xf')
    for perm in ('v_permlane16_swap_b32', 'v_permlane32_swap_b32'):
        P(f'''v_mov_b32 v{t+2}, v{t}
v_mov_b32 v{t+3}, v{t+1}
{perm} v{t}, v{t+2}
{perm} v{t+1}, v{t+3}
v_add_f32 v{t}, v{t}, v{t+2}
v_add_f32 v{t+1}, v{t+1}, v{t+3}''')
    P(f'''v_mul_f32 v{t}, 0x3b000000, v{t}
v_mul_f32 v{t+1}, 0x3b000000, v{t+1}
v_fma_f32 v{t+1}, -v{t}, v{t}, v{t+1}
v_max_f32 v{t+1}, 0, v{t+1}''')
    round_scalar(t); round_scalar(t + 1)
    P(f'v_add_f32 v{t+1}, 0x3727c5ac, v{t+1}'); round_scalar(t + 1)
    P(f'v_sqrt_f32 v{t+1}, v{t+1}'); round_scalar(t + 1)
    P(f'v_rcp_f32 v{t+1}, v{t+1}')

def gate_and_norm(X, x, layer, slow):
    t = x + 8; yy = x + 16; q = x + 24
    stats(x, t)
    unpack8(yy, vY_[X])
    P(f'v_mul_f32 v{t}, v{t}, v{t+1}')
    for k in range(8): P(f'v_fma_f32 v{q+k}, v{x+k}, v{t+1}, -v{t}')
    for k in range(0, 8, 2): P(f'v_pk_fma_f32 {vr(x+k,2)}, {vr(q+k,2)}, {vr(yy+k,2)}, {vr(x+k,2)}')
    for k in range(4): P(f'v_cvt_pk_bf16_f32 v{vX_[X]+k}, v{x+2*k}, v{x+2*k+1}')
    unpack8(x, vX_[X])
    stats(x, t)
    P(f'v_mul_f32 v{t}, v{t}, v{t+1}')
    for k in range(8): P(f'v_fma_f32 v{q+k}, v{x+k}, v{t+1}, -v{t}')
    for k in range(4): P(f'v_cvt_pk_bf16_f32 v{yy+k}, v{q+2*k}, v{q+2*k+1}')
    for k in range(4): P(f'v_min_u32 v{yy+k}, -2, v{yy+k}')
    P(f's_add_u32 s14, s{sXO}, {layer*8192 + X*4096}')
    P(f'buffer_store_dwordx4 {vr(yy,4)}, v{vL16}, {srd(R_WS)}, s14 offen{" sc0 sc1" if slow else ""}')

def xn_gather(X, layer, slow):
    lp, lok = L('xn'), L('xnok')
    cc = ' sc0 sc1' if slow else ' sc1'
    P(f's_add_u32 s14, s{sXI0}, {layer*8192 + X*4096}\ns_add_u32 s15, s{sXI1}, {layer*8192 + X*4096}\ns_mov_b32 s{sSPIN}, 0')
    P.label(lp)
    for i in range(8):
        P(f'buffer_load_dwordx4 {vr(4+4*i,4)}, v{vL16}, {srd(R_WS)}, s{14 + (i>>2)} offen offset:{1024*(i&3)}{cc}')
    P('s_waitcnt vmcnt(0)\nv_max_u32 v2, v4, v5')
    for k in range(6, 36, 2): P(f'v_max3_u32 v2, v2, v{k}, v{k+1}')
    P(f'''v_cmp_eq_u32 vcc, -1, v2
s_cbranch_vccz {lok}
s_add_u32 s{sSPIN}, s{sSPIN}, 1
s_cmp_lt_u32 s{sSPIN}, {SPIN}
s_cbranch_scc1 {lp}''')
    P.label(lok)
    P(f's_mul_i32 s14, s{sW}, {8*XN_RS}\nv_add_u32 v2, s14, v{vL16}')
    for i in range(8):
        P(f'ds_write_b128 v2, {vr(4+4*i,4)} offset:{L_XN + (32*X + i)*XN_RS}')

GC0 = -2.0 * 0.7978845608028654 * 1.4426950408889634
GC1 = GC0 * 0.044715
import struct
def f2h(x): return '0x%08x' % struct.unpack('<I', struct.pack('<f', x))[0]

def g1_quarter(qd):
    X, mt = qd >> 1, qd & 1
    acc = 2; fr = 16
    for s in range(16):
        f = fr + 4 * (s & 3)
        P(f'ds_read_b128 {vr(f,4)}, v{vXF} offset:{L_XN + qd*16*XN_RS + 64*s}')
        for t in range(3):
            c = vr(vB1 + 4 * t, 4) if s == 0 else vr(acc + 4 * t, 4)
            P(f'v_mfma_f32_16x16x32_bf16 {vr(acc+4*t,4)}, {w1reg(t,s)}, {vr(f,4)}, {c}')
    for t in range(3):
        a = acc + 4 * t; T = 32
        for k in range(4): P(f'v_mul_f32 v{T+k}, v{a+k}, v{a+k}')
        for k in range(4): P(f'v_fma_f32 v{T+k}, v{T+k}, s{sC1}, v36')
        for k in range(4): P(f'v_mul_f32 v{T+k}, v{T+k}, v{a+k}')
        for k in range(4): P(f'v_exp_f32 v{T+k}, v{T+k}')
        for k in range(4): P(f'v_add_f32 v{T+k}, 1.0, v{T+k}')
        for k in range(4): P(f'v_rcp_f32 v{T+k}, v{T+k}')
        for k in range(4): P(f'v_mul_f32 v{T+k}, v{T+k}, v{a+k}')
        P(f'v_cvt_pk_bf16_f32 v{T}, v{T}, v{T+1}\nv_cvt_pk_bf16_f32 v{T+1}, v{T+2}, v{T+3}')
        P(f'ds_write_b64 v{vHW}, {vr(T,2)} offset:{X*H_HALF + mt*16*H_RS + 32*t}')

def g2_half(X, layer, slow):
    cc = ' sc0 sc1' if slow else ''
    acc = 2; fr = 20; pk = 40
    P(f's_add_u32 s14, s{sPS}, {X*0x40000}')
    for T in range(4):
        for s in range(11):
            f = fr + 4 * (s & 3)
            P(f'ds_read_b128 {vr(f,4)}, v{vHR} offset:{X*H_HALF + 32*s}')
            P(f'v_mfma_f32_32x32x16_bf16 {vr(acc,16)}, {w2reg(T,s)}, {vr(f,4)}, {"0" if s == 0 else vr(acc,16)}')
        for k in range(8): P(f'v_cvt_pk_bf16_f32 v{pk+k}, v{acc+2*k}, v{acc+2*k+1}')
        for x in range(2):
            P(f'v_permlane32_swap_b32 v{pk+4*x}, v{pk+4*x+2}\nv_permlane32_swap_b32 v{pk+4*x+1}, v{pk+4*x+3}')
        for x in range(2):
            P(f'buffer_store_dwordx4 {vr(pk+4*x,4)}, v{vPS}, {srd(R_WS)}, s14 offen offset:{(2*T+x)*128}{cc}', tag='part')
    P.waitvm('part')
    P(f'''s_lshl_b32 s14, s{sJ}, 2
s_add_u32 s14, s14, s{sFL}
s_add_u32 s14, s14, {(layer*2+X)*512}
v_mov_b32 v2, 0
v_mov_b32 v3, s{sTAG}
s_mov_b64 exec, 1
buffer_store_dword v3, v2, {srd(R_WS)}, s14 offen{cc}
s_mov_b64 exec, -1''')

def reduce_half(X, layer, slow):
    cc = ' sc0 sc1' if slow else ' sc1'
    lp, lok = L('fl'), L('flok')
    red = 0 if X == 0 else L_RED1 - L_RED0
    P(f's_add_u32 s14, s{sFL}, {(layer*2+X)*512}\ns_mov_b32 s{sSPIN}, 0')
    P.label(lp)
    P(f'''buffer_load_dword v2, v{vFLG}, {srd(R_WS)}, s14 offen{cc}
s_waitcnt vmcnt(0)
v_cmp_ne_u32 vcc, s{sTAG}, v2
s_cbranch_vccz {lok}
s_add_u32 s{sSPIN}, s{sSPIN}, 1
s_cmp_lt_u32 s{sSPIN}, {SPIN}
s_cbranch_scc1 {lp}''')
    P.label(lok)
    P(f's_add_u32 s14, s{sPL0}, {X*0x40000}\ns_add_u32 s15, s{sPL1}, {X*0x40000}')
    for lpi in range(4):
        for ph in range(2):
            P(f'buffer_load_dwordx4 {vr(20+8*lpi+4*ph,4)}, v{vPL}, {srd(R_WS)}, s{14+ph} offen offset:{256*lpi}{cc}')
    P(f'v_and_b32 v2, 15, v1\nv_and_b32 v3, 1, v1\nv_lshlrev_b32 v3, 4, v3\nv_mov_b32 v4, 0x3f80\nv_lshlrev_b32 v3, v3, v4\nv_lshrrev_b32 v2, 1, v2')
    for k in range(8):
        P(f'v_cmp_eq_u32 vcc, {k}, v2\nv_cndmask_b32 v{12+k}, 0, v3, vcc')
    for D in range(2):
        first = True
        for st in range(2):
            for ph in range(2):
                P(f'v_mfma_f32_16x16x32_bf16 {vr(4+4*D,4)}, {vr(12+4*st,4)}, {vr(20+8*(2*D+st)+4*ph,4)}, {"0" if first else vr(4+4*D,4)}')
                first = False
    for D in range(2):
        P(f'ds_write_b128 v{vRW}, {vr(4+4*D,4)} offset:{red + 256*D}')
    barrier()
    P(f'ds_read_b128 v[4:7], v{vRR} offset:{red}\nds_read_b128 v[8:11], v{vRR} offset:{red+16}')
    unpack8(12, vX_[X]); unpack8(20, vB2)
    for k in range(0, 8, 2): P(f'v_pk_add_f32 {vr(4+k,2)}, {vr(4+k,2)}, {vr(20+k,2)}')
    for k in range(0, 8, 2): P(f'v_pk_add_f32 {vr(4+k,2)}, {vr(4+k,2)}, {vr(12+k,2)}')
    for k in range(4): P(f'v_cvt_pk_bf16_f32 v{vX_[X]+k}, v{4+2*k}, v{5+2*k}')

def body(slow):
    setup_ffn(slow)
    touches()
    stamp()
    conv()
    stamp()
    pre_flag()
    conv_epilogue()
    stamp()
    wload_all()
    touch_part()
    for t in range(3):
        b = vB1 + 4 * t
        P(f'v_lshlrev_b32 v{b}, 16, v{b+2}\nv_and_b32 v{b+1}, s{sHIM}, v{b+2}\nv_lshlrev_b32 v{b+2}, 16, v{b+3}\nv_and_b32 v{b+3}, s{sHIM}, v{b+3}')
    stamp()
    s1_phase()
    stamp()
    for X in range(2):
        unpack8(4, vX_[X]); gate_and_norm(X, 4, 0, slow)
    mksrd(R_Q, 38, 0x200000)
    P(f's_mov_b32 s{sC1}, {f2h(GC1)}')
    for layer in range(2):
        stamp()
        for X in range(2): xn_gather(X, layer, slow)
        P(f'v_mov_b32 v36, {f2h(GC0)}')
        barrier()
        stamp()
        for qd in range(4): g1_quarter(qd)
        barrier()
        stamp()
        for X in range(2): g2_half(X, layer, slow)
        stamp()
        for X in range(2):
            reduce_half(X, layer, slow)
            if layer == 0:
                unpack8(4, vX_[X]); gate_and_norm(X, 4, 1, slow)
            else:
                P(f's_lshl_b32 s14, s{sLB}, 13\ns_lshl_b32 s15, s{sW}, 10\ns_add_u32 s14, s14, s15\ns_add_u32 s14, s14, {X*4096}')
                P(f'buffer_store_dwordx4 {vr(vX_[X],4)}, v{vL16}, {srd(R_Q)}, s14 offen')
    stamp()
    if PROF:
        P(f's_lshl_b32 s14, s2, 10\ns_lshl_b32 s15, s{sW}, 8\ns_add_u32 s14, s14, s15\ns_add_u32 s14, s14, {WS_PROF}\nv_lshlrev_b32 v2, 2, v1')
        P(f'buffer_store_dword v{vPROF}, v2, {srd(R_WS)}, s14 offen')
    P('s_endpgm')

_old_add = Prog.add
def _add(self, it):
    if isinstance(it, tuple) and it and it[0] == 'MF': self.items.append(it)
    else: _old_add(self, it)
Prog.add = _add

prologue(); kv_phase(); s0_phase()
P.save('fork')
n0 = nstamp[0]
body(False)
P.label('Lslow'); P.restore('fork'); nstamp[0] = n0
s0_slow()
body(True)
P.label('Lend'); P('s_endpgm')
text = P.render()
hdr = open('cdna_kernels/%s.s.ref' % NAME).read().split('\n')
top = [l for l in hdr if l.startswith(';') and '@launch' not in l and 'Override launch' not in l and 'grid=ceil' not in l]
out = '\n'.join(top) + f'''
; @launch grid=(256,1,1) block=(256,1,1) lds={LDS_BYTES}
.amdgcn_target "amdgcn-amd-amdhsa--gfx950"
.text
.globl {NAME}_kernel
.p2align 8
.type {NAME}_kernel,@function
{NAME}_kernel:
{text}
.section .rodata,"a"
.p2align 6
.amdhsa_kernel {NAME}_kernel
  .amdhsa_next_free_vgpr 512
  .amdhsa_next_free_sgpr 102
  .amdhsa_accum_offset 256
  .amdhsa_group_segment_fixed_size 0
  .amdhsa_kernarg_size 112
  .amdhsa_user_sgpr_count 2
  .amdhsa_user_sgpr_kernarg_segment_ptr 1
  .amdhsa_system_sgpr_workgroup_id_x 1
  .amdhsa_float_denorm_mode_32 3
.end_amdhsa_kernel
'''
dst = [a for a in sys.argv[1:] if not a.startswith('--')][0]
open(dst, 'w').write(out)
print('instrs', sum(1 for it in P.final if it.kind not in ('label', 'raw')), 'bytes', len(out), 'stamps', nstamp[0])
```

```python
import re

def _regs(tok):
    tok = tok.strip()
    neg = tok.lstrip('-')
    m = re.fullmatch(r'abs\((.*)\)', neg)
    if m: neg = m.group(1)
    neg = neg.strip('|')
    m = re.fullmatch(r'([vas])(\d+)', neg)
    if m: return [(m.group(1), int(m.group(2)))]
    m = re.fullmatch(r'([vas])\[(\d+):(\d+)\]', neg)
    if m: return [(m.group(1), i) for i in range(int(m.group(2)), int(m.group(3)) + 1)]
    if neg in ('vcc',): return [('x', 'vcc')]
    if neg in ('exec',): return [('x', 'exec')]
    if neg == 'm0': return [('x', 'm0')]
    return []

def _split(ops):
    out, depth, cur = [], 0, ''
    for ch in ops:
        if ch in '[(': depth += 1
        if ch in '])': depth -= 1
        if ch == ',' and depth == 0:
            out.append(cur.strip()); cur = ''
        else: cur += ch
    if cur.strip(): out.append(cur.strip())
    return out

TRANS = ('v_exp_f32', 'v_log_f32', 'v_rcp_f32', 'v_rsq_f32', 'v_sqrt_f32', 'v_sin_f32', 'v_cos_f32')

class I:
    __slots__ = ('text', 'mn', 'kind', 'rd', 'wr', 'passes', 'srcC', 'srcAB', 'tag', 'wide', 'sdata', 'dpp', 'discard', 'cost', 'isdot')
    def __init__(self, text, tag=None, discard=False):
        self.text = text; self.tag = tag; self.discard = discard
        t = text.split(None, 1)
        mn = self.mn = t[0]
        rest = t[1] if len(t) > 1 else ''
        ops = _split(rest)
        mods = ''
        if ops:
            p = ops[-1].split(None, 1)
            if len(p) > 1 and not ops[-1].startswith('hwreg') and not mn.startswith('s_waitcnt'):
                ops[-1] = p[0]; mods = p[1]
        R = [_regs(o) for o in ops]
        rd, wr = [], []
        self.passes = 0; self.srcC = []; self.srcAB = []; self.wide = False; self.sdata = []; self.dpp = False; self.isdot = False
        base = re.sub(r'_(e32|e64|dpp|sdwa)$', '', mn)
        if mn.startswith('v_mfma'):
            self.kind = 'mfma'; self.passes = 8 if '32x32' in mn else 4
            wr = R[0]; self.srcAB = R[1] + R[2]; self.srcC = R[3]; rd = self.srcAB + self.srcC
        elif mn.startswith('v_'):
            self.kind = 'trans' if base in TRANS else 'valu'
            if base.startswith('v_cmp'):
                wr = R[0]; rd = sum(R[1:], [])
            elif base.startswith('v_permlane') and 'swap' in base:
                wr = R[0] + R[1]; rd = R[0] + R[1]; self.kind = 'perm'
            else:
                wr = R[0]; rd = sum(R[1:], [])
                if base in ('v_fmac_f32', 'v_dot2c_f32_bf16', 'v_writelane_b32'): rd = rd + R[0]
                if base == 'v_cndmask_b32' and len(ops) == 3: rd = rd + [('x', 'vcc')]
            if mn.endswith('_dpp') or 'row_' in mods or 'quad_perm' in mods:
                self.dpp = True; rd = rd + R[0]
            if base.startswith('v_dot2'): self.isdot = True
            if base in ('v_readfirstlane_b32', 'v_readlane_b32'): self.kind = 'rdlane'
        elif mn.startswith('ds_'):
            self.kind = 'ds'
            if mn.startswith('ds_read') or mn.startswith('ds_bpermute') or mn.startswith('ds_swizzle'):
                wr = R[0]; rd = sum(R[1:], [])
            else:
                rd = sum(R, [])
        elif mn.startswith('buffer_') or mn.startswith('global_'):
            self.kind = 'vmem'
            if mn in ('buffer_wbl2', 'buffer_inv'): pass
            elif 'load' in mn:
                if re.search(r'\blds\b', mods):
                    rd = sum(R, []) + [('x', 'm0')]; self.kind = 'dma'
                else:
                    wr = R[0]; rd = sum(R[1:], [])
            else:
                rd = sum(R, [])
                self.sdata = R[0] if mn.startswith('buffer_') else R[1]
                if 'x4' in mn or 'x3' in mn: self.wide = True
        elif mn.startswith('s_load') or mn.startswith('s_memtime') or mn.startswith('s_memrealtime'):
            self.kind = 'smem'; wr = R[0]; rd = sum(R[1:], [])
        elif mn in ('s_waitcnt', 's_nop', 's_barrier', 's_endpgm', 's_sleep', 's_setprio'):
            self.kind = mn[2:]
        elif mn.startswith('s_cbranch') or mn == 's_branch':
            self.kind = 'branch'
        elif mn.startswith('s_'):
            self.kind = 'salu'
            if mn.startswith('s_cmp') or mn.startswith('s_bitcmp'): rd = sum(R, [])
            else:
                wr = R[0]; rd = sum(R[1:], [])
                if 'saveexec' in mn: wr = wr + [('x', 'exec')]
        else:
            raise ValueError('unknown instr ' + text)
        self.rd = set(rd); self.wr = set(wr)
        self.cost = 2 if self.kind == 'trans' else 1
    def __repr__(self): return self.text

class Label:
    def __init__(self, name, soft=False): self.name = name; self.kind = 'label'; self.text = name + ':'; self.soft = soft; self.cost = 0
class Raw:
    def __init__(self, text): self.text = text; self.kind = 'raw'
class Ctl:
    def __init__(self, what, arg=None): self.what = what; self.arg = arg; self.kind = 'ctl'; self.text = ''; self.cost = 1 if what == 'waitvm' else 0

VALUISH = ('valu', 'trans', 'perm', 'rdlane')

def states_needed(p, c):
    n = 0
    pk, ck = p.kind, c.kind
    if pk in VALUISH:
        vw = {r for r in p.wr if r[0] in 'va'}
        sw = {r for r in p.wr if r[0] in 'sx'}
        if vw:
            hit = vw & c.rd
            if hit:
                if ck == 'mfma': n = max(n, 2)
                if ck == 'perm' or (ck in VALUISH and c.dpp): n = max(n, 2)
                if ck == 'rdlane': n = max(n, 1)
                if pk == 'trans' and ck in VALUISH and ck != 'trans': n = max(n, 1)
                if pk == 'trans' and ck in ('ds', 'vmem', 'dma'): n = max(n, 1)
            if p.isdot and (vw & (c.rd | c.wr)):
                if c.kind in VALUISH and c.isdot and c.mn == p.mn:
                    toks = _split(c.text.split(None, 1)[1])
                    ab = set(_regs(toks[1]) + _regs(toks[2]))
                    if vw & ab: n = max(n, 3)
                else: n = max(n, 3)
        if sw:
            if sw & c.rd:
                if ck in VALUISH or ck == 'mfma': n = max(n, 4 if ck == 'rdlane' or c.mn.startswith('v_writelane') else 2)
                if ck in ('vmem', 'dma'): n = max(n, 5)
                if ck in ('salu', 'smem'): n = max(n, 1)
    if pk == 'mfma':
        big = {4: 8, 8: 12}[p.passes]
        D = p.wr
        if ck == 'mfma':
            if D & set(c.srcAB): n = max(n, big)
            if D & set(c.srcC):
                if not (set(c.srcC) == D and c.passes == p.passes): n = max(n, {4: 6, 8: 10}[p.passes])
            elif D & c.wr:
                n = max(n, big)
        elif ck in VALUISH or ck in ('ds', 'vmem', 'dma'):
            if D & (c.rd | c.wr): n = max(n, big)
        if ck in VALUISH and set(p.srcC) & c.wr: n = max(n, {4: 3, 8: 7}[p.passes])
    if pk == 'vmem' and p.wide and set(p.sdata) & c.wr:
        n = max(n, 2 if ck in VALUISH or ck == 'mfma' else 1)
    if pk == 'salu' and ('x', 'm0') in p.wr and ck == 'dma': n = max(n, 1)
    return n

class Prog:
    def __init__(self):
        self.items = []
    def __call__(self, text, **kw):
        for line in text.strip().split('\n'):
            line = line.split(';')[0].strip()
            if not line: continue
            if line.endswith(':'): self.items.append(Label(line[:-1]))
            else: self.items.append(I(line, **kw))
        return self
    def add(self, it):
        if isinstance(it, str): self(it)
        elif isinstance(it, (list, tuple)):
            for x in it: self.add(x)
        else: self.items.append(it)
    def raw(self, t): self.items.append(Raw(t))
    def label(self, n, soft=False): self.items.append(Label(n, soft))
    def waitvm(self, tag): self.items.append(Ctl('waitvm', tag))
    def waitlgkm(self): self('s_waitcnt lgkmcnt(0)')
    def save(self, name): self.items.append(Ctl('save', name))
    def restore(self, name): self.items.append(Ctl('restore', name))
    def merge(self, names): self.items.append(Ctl('merge', names))
    def assume(self, vm=None): self.items.append(Ctl('assume', vm))

    def _waits(self):
        out = []
        vm = []
        lg = []
        saved = {}
        def emit_wait(nvm=None, nlg=None):
            nonlocal vm, lg
            parts = []
            if nvm is not None and nvm < len(vm):
                parts.append('vmcnt(%d)' % min(nvm, 63)); vm = vm[len(vm) - min(nvm, 63):] if nvm else []
            if nlg is not None and nlg < len(lg):
                if any(s for _, s in lg): nlg = 0
                k = min(nlg, 15)
                parts.append('lgkmcnt(%d)' % k); lg = lg[len(lg) - k:] if k else []
            if parts: out.append(I('s_waitcnt ' + ' '.join(parts)))
        for it in self.items:
            k = it.kind
            if k == 'ctl':
                if it.what == 'waitvm':
                    idx = [i for i, e in enumerate(vm) if e[1] == it.arg or it.arg == '*' or (isinstance(it.arg, (list, set)) and e[1] in it.arg)]
                    if idx: emit_wait(nvm=len(vm) - 1 - max(idx))
                elif it.what == 'need':
                    nl = None
                    for i, e in enumerate(lg):
                        if e[0] & it.arg: nl = len(lg) - 1 - i
                    emit_wait(None, nl)
                elif it.what == 'save': saved[it.arg] = (list(vm), list(lg))
                elif it.what == 'restore': vm, lg = list(saved[it.arg][0]), list(saved[it.arg][1])
                elif it.what == 'assume': vm, lg = [], []
                elif it.what == 'merge':
                    sts = [saved[n] for n in it.arg]
                    def mrg(qs, dummy):
                        pre = 0
                        while all(len(q) > pre for q in qs) and all(q[pre] is qs[0][pre] for q in qs): pre += 1
                        for q in qs:
                            for e in q[pre:]:
                                assert not e[0] or (len(e) > 2 and e[2]), 'pending load across merge: %s' % (e,)
                        return qs[0][:pre] + [dummy] * min(len(q) - pre for q in qs)
                    vm = mrg([s[0] for s in sts], (set(), None, True))
                    lg = mrg([s[1] for s in sts], (set(), False))
                continue
            if k in ('label', 'raw'):
                out.append(it); continue
            if k == 'waitcnt':
                m = re.search(r'vmcnt\((\d+)\)', it.text)
                if m:
                    n = int(m.group(1)); vm = vm[len(vm) - n:] if n and n < len(vm) else ([] if n == 0 else vm)
                m = re.search(r'lgkmcnt\((\d+)\)', it.text)
                if m:
                    n = int(m.group(1)); lg = lg[len(lg) - n:] if n and n < len(lg) else ([] if n == 0 else lg)
                out.append(it); continue
            touch = it.rd | it.wr
            nvm = nlg = None
            for i, e in enumerate(vm):
                if e[0] & touch and not (e[2] and not (e[0] & it.rd) and k in ('vmem',)):
                    nvm = len(vm) - 1 - i
            for i, e in enumerate(lg):
                if e[0] & touch: nlg = len(lg) - 1 - i
            emit_wait(nvm, nlg)
            out.append(it)
            if k in ('vmem', 'dma'):
                vm.append((set(it.wr), it.tag, it.discard))
                assert len(vm) <= 63, 'too many outstanding vm ops at ' + it.text
            elif k == 'ds': lg.append((set(it.wr), False))
            elif k == 'smem':
                lg.append((set(it.wr), True))
            if len(lg) > 15 and k in ('ds', 'smem'):
                pass
        return out

    def _nops(self, items):
        out = []
        hist = []
        snap = {}
        def drain():
            need = 0
            for p, d in hist:
                if p.kind == 'mfma': need = max(need, {4: 8, 8: 12}[p.passes] - d)
                elif p.kind in VALUISH: need = max(need, (5 if any(r[0] in 'sx' for r in p.wr) else 3) - d)
                elif p.kind == 'vmem' and p.wide: need = max(need, 2 - d)
                elif p.kind == 'salu' and ('x', 'm0') in p.wr: need = max(need, 1 - d)
            return need
        def pad(n):
            nonlocal hist
            while n > 0:
                k = min(n, 16); out.append(I('s_nop %d' % (k - 1))); n -= k
                hist = [(p, d + k) for p, d in hist]
        for it in items:
            if it.kind == 'raw': out.append(it); continue
            if it.kind == 'label':
                if not it.soft:
                    pad(drain()); hist = []
                elif it.name in snap:
                    best = {}
                    for p, d in hist + snap.pop(it.name):
                        if id(p) not in best or d < best[id(p)][1]: best[id(p)] = (p, d)
                    hist = list(best.values())
                out.append(it); continue
            if it.kind == 'branch' and it.tag != 'soft':
                pad(drain() - 1)
            need = 0
            for p, d in hist: need = max(need, states_needed(p, it) - d)
            pad(need)
            out.append(it)
            step = int(it.text.split()[1]) + 1 if it.kind == 'nop' else 1
            hist = [(p, d + step) for p, d in hist if d + step < 20]
            hist.append((it, 0))
            if it.kind == 'branch' and it.tag == 'soft':
                tgt = it.text.split()[1]
                snap[tgt] = snap.get(tgt, []) + list(hist)
        return out

    def render(self):
        items = self._nops(self._waits())
        self.final = items
        return '\n'.join(it.text if it.kind in ('label', 'raw') else ' ' + it.text for it in items)

def interleave(main, fill, cap, start=0, lead=0):
    out, fi = [], 0
    for i, m in enumerate(main):
        out.append(m)
        if i < start: continue
        c = cap
        while fi < len(fill):
            f = fill[fi]
            cost = getattr(f, 'cost', 0)
            if cost > c: break
            out.append(f); c -= cost; fi += 1
    out.extend(fill[fi:])
    return out


def parse(text, **kw):
    p = Prog(); p(text, **kw); return p.items

def _movable(it): return it.kind in ('valu', 'trans') and not (it.wr | it.rd) & {('x', 'vcc'), ('x', 'exec')} and not any(r[0] == 's' for r in it.wr)
def weave(main, cap, fill, pinned=None, start=0, pre=None, window=24):
    out = []
    fill = list(fill)
    pinned = pinned or {}; pre = pre or {}
    for i, m in enumerate(main):
        out.extend(pre.get(i, []))
        out.append(m)
        c = cap - sum(x.cost for x in pre.get(i + 1, []))
        for it in pinned.get(i, []):
            out.append(it); c -= it.cost
        if i < start: continue
        while fill and c >= 0:
            pick = None
            rd, wr = set(), set()
            for k, f in enumerate(fill[:window]):
                ok = f.cost <= c and (k == 0 or (_movable(f) and not (f.rd & wr or f.wr & rd or f.wr & wr)))
                if ok and out[-1].kind == 'trans' and f.kind == 'valu' and out[-1].wr & f.rd: ok = False
                if ok: pick = k; break
                if not _movable(f): break
                rd |= f.rd; wr |= f.wr
            if pick is None: break
            f = fill.pop(pick); out.append(f); c -= f.cost
    return out, fill
```

```python
import sys, struct
from asmdsl import *
NAME = "interleave_layers__ssm_conv_h3__dense_activation_gelu__prompt"
DBG = '--dbg' in sys.argv
PROF = '--prof' in sys.argv or DBG
KEEP = ['k arrived','kvt stored','s0 seen','h built','conv done','y stored','y seen','loop top0','g1 done0','g2b done0','redA','redB','loop top1','g2b done1','end']
def opt(name, default):
    for a in sys.argv:
        if a.startswith('--' + name + '='): return type(default)(a.split('=')[1])
    return default
SPIN = 0x40000
S0_TMO = 64
WTOUCH = opt('wtouch', 0)
NT = ' nt' if opt('nt', 1) else ''
PNT = ' nt' if opt('pnt', 1) else ''
KNT = ' nt' if opt('knt', 1) else ''
FINE = opt('fine', 0)
WNT = ' nt' if opt('wnt', 0) else ''
XVPOS = opt('xvpos', 8)
W2T = opt('w2t', 3)
PMODE = opt('pmode', 2)
WCONV = opt('wconv', 1)

WS_EPOCH = 0; WS_PRE = 0x1000; WS_FL = 0x10000; WS_KVT = 0x100000; WS_Y = 0x500000; WS_XNS = 0x700000
WS_PART = 0x1000000; WS_PROF = 0x3000000; WS_SIZE = 0x3100000
L_HC = 0; HC_CS = 4160; HC_CH = 8 * HC_CS; L_XN = 0; XN_RS = 1056
L_U = 67584; U_CH = 4608; L_YT = L_U; YT_RS = 1040; L_RED0 = L_U; RED_RS = 2080
L_TB = 76800; L_H = 76800; H_RS = 400; H_HALF = 32 * H_RS
L_ST = 102400; ST_W = 15360; L_RED1 = L_ST
L_E = 32 * XN_RS; E_W = 8 * XN_RS; C_W = 6400
LDS_BYTES = 163840
sW, sXG, sIDX, sLB, sTAG, sTAG0, sJ, sG = 3, 4, 5, 6, 7, 8, 9, 10
R_K, R_V, R_T, R_H, R_WS, R_W1, R_W2, R_Q = 44, 48, 52, 56, 60, 64, 68, 72
sXO, sXI0, sXI1, sPS, sPL0, sPL1, sFL, sLAY, sST = 76, 77, 78, 79, 80, 81, 82, 83, 84
sSPIN = 85; sT0, sT1, sT2, sT3 = 86, 87, 88, 89
sWO, sE = 94, 95
sSELLO, sSELHI, sHIM, sC0, sC1, sXL = 96, 97, 98, 99, 100, 101
sCW = 11
def srd(r): return 's[%d:%d]' % (r, r + 3)
vX_ = [100, 104]; vY_ = [108, 112]; vB2 = 116; vB1 = 120
vXF, vHW, vHR, vPS, vPL, vRW, vRR, vL16, vGC0, vPROF, vFLG, vTAG = 132, 133, 134, 135, 136, 137, 138, 139, 140, 141, 142, 143
JNK = 'a172'
vW1S, vW2S, vW1T, vW2T = 88, 91, 95, 96
vSEL = 88
def vr(a, n): return 'v[%d:%d]' % (a, a + n - 1) if n > 1 else 'v%d' % a
def ar(a, n): return 'a[%d:%d]' % (a, a + n - 1)
def w1reg(t, s, half=None):
    fi = 3 * s + t
    k, b = ('a', 176 + 4 * fi) if fi < 20 else ('v', 144 + 4 * (fi - 20))
    if half is None: return '%s[%d:%d]' % (k, b, b + 3)
    return '%s[%d:%d]' % (k, b + 2 * half, b + 2 * half + 1)
def w2reg(T, s, half=None):
    b = 4 * (11 * T + s)
    if half is None: return 'a[%d:%d]' % (b, b + 3)
    return 'a[%d:%d]' % (b + 2 * half, b + 2 * half + 1)
def f2h(x): return '0x%08x' % struct.unpack('<I', struct.pack('<f', x))[0]
GC0 = -2.0 * 0.7978845608028654 * 1.4426950408889634
GC1 = GC0 * 0.044715

P = Prog()
nstamp = [1]; names = {}
def stamp(name='', loop=False):
    if not PROF or (DBG and name not in KEEP): return []
    n = nstamp[0]; nstamp[0] += 1; names[n] = name
    if loop:
        nstamp[0] += 1; names[n + 1] = name + ' (L1)'
        P('s_memtime s[90:91]\ns_add_u32 s92, s%d, %d\ns_waitcnt lgkmcnt(0)\ns_mov_b32 m0, s92\nv_writelane_b32 v%d, s90, m0' % (sLAY, n, vPROF))
    else:
        P('s_memtime s[90:91]\ns_waitcnt lgkmcnt(0)\nv_writelane_b32 v%d, s90, %d' % (vPROF, n))
def mksrd(r, ptr, nbytes):
    return parse('s_mov_b32 s%d, s%d\ns_mov_b32 s%d, s%d\ns_mov_b32 s%d, 0x%x\ns_mov_b32 s%d, 0x20000' % (r, ptr, r + 1, ptr + 1, r + 2, nbytes, r + 3))
def barrier(): P('s_waitcnt lgkmcnt(0)\ns_barrier')
uid = [0]
def L(n):
    uid[0] += 1; return 'L%s_%d' % (n, uid[0])
ool = []

def retry(cond_branch, body_items, check_text):
    lr, lb, ll = L('rt'), L('bk'), L('lp')
    blk = [Label(lr)] + parse(f's_nop 7\ns_nop 7\ns_mov_b32 s{sSPIN}, 0') + [Label(ll)] + body_items + parse(check_text) + \
        parse(f's_cbranch_vccz {lb}\ns_add_u32 s{sSPIN}, s{sSPIN}, 1\ns_cmp_lt_u32 s{sSPIN}, {SPIN}\ns_cbranch_scc1 {ll}\ns_branch {lb}')
    ool.append(blk)
    return [I(f's_cbranch_vccnz {lr}', tag='soft'), Label(lb, soft=True)]

def prologue():
    P('''s_cmp_ge_u32 s2, 256
s_cbranch_scc1 Lend
s_load_dwordx16 s[16:31], s[0:1], 0
s_load_dwordx4 s[40:43], s[0:1], 96
s_load_dwordx8 s[32:39], s[0:1], 64
s_getpc_b64 s[12:13]''')
    P.label('Lpc', soft=True)
    P('v_lshlrev_b32 v2, 7, v0')
    P(f'global_load_dword {JNK}, v2, s[12:13]', discard=True)
    if PROF:
        P('s_memrealtime s[92:93]\ns_memtime s[90:91]\nv_mov_b32 v%d, 0\ns_waitcnt lgkmcnt(0)\nv_writelane_b32 v%d, s92, 0\nv_writelane_b32 v%d, s90, 1' % (vPROF, vPROF, vPROF))
        nstamp[0] = 2
    P(f'''s_and_b32 s{sXG}, s2, 7
s_lshr_b32 s{sIDX}, s2, 3
s_lshl_b32 s14, s{sIDX}, 16
s_lshl_b32 s15, s{sXG}, 7
s_add_u32 s14, s14, s15
v_lshrrev_b32 v7, 3, v0
v_and_b32 v8, 7, v0
v_lshlrev_b32 v5, 11, v7
v_lshl_add_u32 v5, v8, 4, v5
v_add_u32 v5, s14, v5
v_add_u32 v6, 0x400, v5
v_add_u32 v4, 0xfffffc00, v5
v_add_u32 v3, 0xfffff800, v5
v_add_u32 v9, 0xfffff400, v5
s_lshl_b32 s15, s{sXG}, 9
v_lshl_add_u32 v10, v8, 6, s15
s_mov_b32 s{R_K+2}, 0x200000
s_mov_b32 s{R_K+3}, 0x20000
s_mov_b32 s{R_V+2}, 0x200000
s_mov_b32 s{R_V+3}, 0x20000
s_mov_b32 s{R_T+2}, 4096
s_mov_b32 s{R_T+3}, 0x20000
v_lshrrev_b32 v11, 6, v0
s_waitcnt lgkmcnt(0)
s_mov_b32 s{R_K}, s18
s_mov_b32 s{R_K+1}, s19''')
    for d, off in enumerate([9, 3, 4, 5, 6]):
        P(f'buffer_load_dwordx4 {vr(12+4*d,4)}, v{off}, {srd(R_K)}, 0 offen{NT}')
    P(f's_mov_b32 s{R_V}, s20\ns_mov_b32 s{R_V+1}, s21')
    P(f'buffer_load_dwordx4 v[32:35], v5, {srd(R_V)}, 0 offen{NT}\nbuffer_load_dwordx4 v[36:39], v6, {srd(R_V)}, 0 offen{NT}')
    P(f's_mov_b32 s{R_T}, s22\ns_mov_b32 s{R_T+1}, s23')
    for i in range(4):
        P(f'buffer_load_dwordx4 {vr(40+4*i,4)}, v10, {srd(R_T)}, 0 offen offset:{16*i}')
    P(f's_load_dword s{sTAG}, s[42:43], 0')
    P(f'''v_readfirstlane_b32 s{sW}, v11
s_getreg_b32 s11, hwreg(HW_REG_XCC_ID, 0, 3)
v_and_b32 v1, 63, v0
s_lshl_b32 s{sLB}, s{sXG}, 5
s_add_u32 s{sLB}, s{sLB}, s{sIDX}
s_and_b32 s{sJ}, s{sIDX}, 7
s_lshr_b32 s{sG}, s{sLB}, 3
v_lshlrev_b32 v{vL16}, 4, v1
v_mul_u32_u24 v11, {8*33*4}, v8
v_lshlrev_b32 v7, 2, v7
v_sub_u32 v11, v11, v7
v_add_u32 v11, {L_TB + 31*4}, v11
v_add_u32 v2, 0x8000, v2
v_min_u32 v2, Lslow-Lpc, v2''')
    P.add(mksrd(R_WS, 42, WS_SIZE))
    P('s_barrier')

def w_touch(r):
    it = parse(f'''s_mul_i32 s12, s{sIDX}, {344*128}
s_mul_i32 s13, s{sW}, {86*128}
s_add_u32 s12, s12, s13
v_lshlrev_b32 v86, 7, v1
v_add_u32 v87, 0x2000, v86
v_cmp_gt_u32 vcc, 22, v1
v_mov_b32 v47, 0x7fffffff
s_nop 0
v_cndmask_b32 v87, v47, v87, vcc''')
    it += parse(f'buffer_load_dword {JNK}, v86, {srd(r)}, s12 offen\nbuffer_load_dword {JNK}, v87, {srd(r)}, s12 offen', discard=True)
    return it

def w_touch_early():
    P(f'''s_mul_i32 s14, s{sIDX}, {344*128}
s_mul_i32 s15, s{sW}, {172*128}
s_add_u32 s14, s14, s15
s_sub_u32 s14, s14, {2*172*128}
v_lshlrev_b32 v3, 7, v1
v_add_u32 v4, 0x4000, v3
v_cmp_gt_u32 vcc, 44, v1
v_mov_b32 v5, 0x7fffffff
s_add_u32 s15, s14, 0x2000
v_cndmask_b32 v4, v5, v4, vcc''')
    for r in ((R_W1, R_W2) if W2T == 3 else (R_W1,)):
        P(f'buffer_load_dword {JNK}, v3, {srd(r)}, s14 offen', discard=True)
        P(f'buffer_load_dword {JNK}, v3, {srd(r)}, s15 offen', discard=True)
        P(f'buffer_load_dword {JNK}, v4, {srd(r)}, s14 offen', discard=True)

def setup_common():
    P(f'''s_mov_b32 s{sSELLO}, 0x05040100
s_mov_b32 s{sSELHI}, 0x07060302
s_mov_b32 s{sHIM}, 0xffff0000
s_lshl_b32 s14, s{sG}, 19
s_lshl_b32 s15, s{sW}, 10
s_add_u32 s14, s14, s15
s_add_u32 s14, s14, {WS_PART}
s_lshl_b32 s15, s{sJ}, 12
s_add_u32 s{sPS}, s14, s15
s_lshl_b32 s15, s{sJ}, 15
s_add_u32 s{sPL0}, s14, s15
s_add_u32 s{sPL1}, s{sPL0}, 0x4000
s_lshl_b32 s14, s{sG}, 4
s_add_u32 s14, s14, s{sW}
s_lshl_b32 s14, s14, 7
s_add_u32 s{sFL}, s14, {WS_FL}
s_mul_i32 s14, s{sW}, {ST_W}
s_add_u32 s{sST}, s14, {L_ST}
s_mul_i32 s{sXL}, s{sW}, {E_W}
s_add_u32 s{sE}, s{sXL}, {L_E}
s_lshl_b32 s14, s{sLB}, 14
s_lshl_b32 s15, s{sW}, 10
s_add_u32 s{sXO}, s14, s15
s_lshl_b32 s14, s{sG}, 17
s_lshl_b32 s15, s{sW}, 15
s_add_u32 s{sXI0}, s14, s15
s_lshl_b32 s14, s{sXG}, 19
s_sub_u32 s15, 31, s{sIDX}
s_lshl_b32 s15, s15, 8
s_add_u32 s14, s14, s15
s_add_u32 s{sT1}, s14, {WS_KVT}''')
    P(f'''v_and_b32 v144, 15, v1
v_lshrrev_b32 v145, 4, v1
v_and_b32 v146, 31, v1
v_lshrrev_b32 v147, 5, v1
v_mul_u32_u24 v{vXF}, {XN_RS}, v144
v_lshl_add_u32 v{vXF}, v145, 4, v{vXF}
v_mul_u32_u24 v{vHW}, {H_RS}, v144
v_lshl_add_u32 v{vHW}, v145, 3, v{vHW}
s_mul_i32 s14, s{sW}, 96
s_add_u32 s14, s14, {L_H}
v_add_u32 v{vHW}, s14, v{vHW}
v_mul_u32_u24 v{vHR}, {H_RS}, v146
v_lshl_add_u32 v{vHR}, v147, 4, v{vHR}
v_add_u32 v{vHR}, {L_H}, v{vHR}
v_lshrrev_b32 v148, 2, v146
v_lshlrev_b32 v{vPS}, 15, v148
v_and_b32 v148, 3, v146
v_lshl_add_u32 v{vPS}, v148, 5, v{vPS}
v_lshl_add_u32 v{vPS}, v147, 4, v{vPS}
v_lshlrev_b32 v{vPL}, 12, v145
v_lshl_add_u32 v{vPL}, v144, 4, v{vPL}
v_bfe_u32 v148, v1, 1, 2
v_mul_u32_u24 v{vRW}, {RED_RS}, v148
v_lshl_add_u32 v{vRW}, v147, 7, v{vRW}
v_bfe_u32 v148, v1, 3, 1
v_lshl_add_u32 v{vRW}, v148, 6, v{vRW}
v_and_b32 v148, 1, v1
v_lshl_add_u32 v{vRW}, v148, 5, v{vRW}
v_bfe_u32 v148, v1, 4, 1
v_lshl_add_u32 v{vRW}, v148, 4, v{vRW}
s_lshl_b32 s14, s{sW}, 9
s_add_u32 s14, s14, {L_RED0}
v_add_u32 v{vRW}, s14, v{vRW}
s_mul_i32 s14, s{sW}, {RED_RS}
s_add_u32 s14, s14, {L_RED0}
v_lshl_add_u32 v{vRR}, v1, 5, s14
v_and_b32 v148, 7, v1
v_lshlrev_b32 v{vFLG}, 2, v148
v_mov_b32 v{vGC0}, {f2h(GC0)}''')
    P(f's_mul_i32 s14, s{sJ}, 352\ns_mul_i32 s15, s{sW}, 96\ns_add_u32 s14, s14, s15\ns_movk_i32 s15, 0x2aab\nv_mov_b32 v151, 0x7fffffff')
    for i in range(3):
        P(f'''v_add_u32 v148, {64*i}, v1
v_mul_u32_u24 v149, s15, v148
v_lshrrev_b32 v149, 16, v149
v_mul_u32_u24 v150, 6, v149
v_sub_u32 v148, v148, v150
v_lshl_add_u32 v148, v148, 4, s14
v_cmp_gt_u32 vcc, 2752, v148
v_mul_u32_u24 v149, 2752, v149
v_add_u32 v149, v149, v148
v_add_u32 v149, {(-1024*i) & 0xffffffff}, v149
v_cndmask_b32 v{vW1S+i}, v151, v149, vcc''')
    P(f'''v_lshlrev_b32 v148, 2, v145
v_xor_b32 v148, v144, v148
v_lshlrev_b32 v{vW2S}, 10, v145
v_lshl_add_u32 v{vW2S}, v148, 4, v{vW2S}
s_mul_i32 s14, s{sJ}, {176*1024}
s_lshl_b32 s15, s{sW}, 8
s_add_u32 s14, s14, s15
v_add_u32 v{vW2S}, s14, v{vW2S}
v_add_u32 v{vW2S+1}, 3072, v{vW2S}
v_add_u32 v{vW2S+2}, 6144, v{vW2S}
v_add_u32 v{vW2S+3}, 9216, v{vW2S}
v_bfe_u32 v149, v1, 2, 2
v_lshl_add_u32 v148, v145, 3, v149
v_mul_u32_u24 v{vW1T}, 96, v148
v_and_b32 v150, 3, v1
v_lshl_add_u32 v{vW1T}, v150, 3, v{vW1T}
v_add_u32 v{vW1T}, s{sST}, v{vW1T}
v_bfe_u32 v148, v1, 4, 1
v_bfe_u32 v150, v1, 1, 1
v_lshl_add_u32 v148, v148, 1, v150
v_lshl_add_u32 v148, v149, 2, v148
v_lshlrev_b32 v148, 4, v148
v_and_b32 v150, 1, v1
v_lshl_add_u32 v148, v150, 3, v148
v_lshl_add_u32 v150, v147, 3, v149
v_lshl_add_u32 v148, v150, 8, v148
v_add_u32 v{vW2T}, s{sST}, v148
v_xor_b32 v{vW2T+1}, 64, v{vW2T}
v_xor_b32 v{vW2T+2}, 0x80, v{vW2T}
v_xor_b32 v{vW2T+3}, 0xc0, v{vW2T}''')
    P(f'''s_lshl_b32 s14, s{sW}, 4
v_add_u32 v148, s14, v145
v_mul_u32_u24 v152, 132, v148
v_lshl_add_u32 v152, v144, 3, v152
v_add_u32 v152, {L_TB}, v152
v_lshlrev_b32 v148, 13, v148
v_lshl_add_u32 v153, v144, 4, v148''')

def kv_phase():
    r = lambda d, m: 12 + 4 * d + m
    T = 156
    for m in range(4):
        for h, sel in enumerate((sSELLO, sSELHI)):
            b = T + 4 * h
            P(f'''v_perm_b32 v{b}, v{r(0,m)}, v{r(1,m)}, s{sel}
v_perm_b32 v{b+1}, v{r(1,m)}, v{r(2,m)}, s{sel}
v_perm_b32 v{b+2}, v{r(2,m)}, v{r(3,m)}, s{sel}
v_perm_b32 v{b+3}, v{r(3,m)}, v{r(4,m)}, s{sel}''')
        if m == 0: stamp('k arrived')
        for h in range(2):
            b = T + 4 * h; i = 2 * m + h; a = T + 8 + 2 * h
            P(f'''v_dot2_f32_bf16 v{a}, v{b}, v{41+2*i}, 0
v_dot2_f32_bf16 v{a+1}, v{b+1}, v{41+2*i}, 0
v_dot2_f32_bf16 v{a}, v{b+2}, v{40+2*i}, v{a}
v_dot2_f32_bf16 v{a+1}, v{b+3}, v{40+2*i}, v{a+1}''')
        P(f'''v_lshlrev_b32 v{T+12}, 16, v{32+m}
v_lshlrev_b32 v{T+13}, 16, v{36+m}
v_and_b32 v{T+14}, s{sHIM}, v{32+m}
v_and_b32 v{T+15}, s{sHIM}, v{36+m}
v_pk_mul_f32 {vr(T+8,2)}, {vr(T+8,2)}, {vr(T+12,2)}
v_pk_mul_f32 {vr(T+10,2)}, {vr(T+10,2)}, {vr(T+14,2)}
v_cvt_pk_bf16_f32 v{T+16}, v{T+9}, v{T+8}
v_cvt_pk_bf16_f32 v{T+17}, v{T+11}, v{T+10}
ds_write_b32 v11, v{T+16} offset:{(2*m)*132}
ds_write_b32 v11, v{T+17} offset:{(2*m+1)*132}''')
    for i in range(4):
        P(f'v_mov_b32 v{13+4*i}, s{sTAG0}\nv_mov_b32 v{15+4*i}, s{sTAG0}')
    barrier()
    for i in range(4):
        P(f'ds_read_b32 v{12+4*i}, v152 offset:{i*4*132}\nds_read_b32 v{14+4*i}, v152 offset:{i*4*132+4}')
    kvt_stores('')
    stamp('kvt stored')

def tags():
    P(f'''s_add_u32 s{sTAG}, s{sTAG}, 8
s_and_b32 s{sTAG}, s{sTAG}, -8
s_or_b32 s{sTAG0}, s{sTAG}, s11
v_mov_b32 v{vTAG}, s{sTAG}
s_mul_i32 s{sCW}, s{sW}, {C_W}
s_add_u32 s{sCW}, s{sCW}, {L_H}''')

def kvt_stores(cc):
    P(f's_mov_b32 s{sT2}, s{sT1}')
    for i in range(4):
        P(f'buffer_store_dwordx4 {vr(12+4*i,4)}, v153, {srd(R_WS)}, s{sT2} offen{cc}')
        if i < 3: P(f's_add_u32 s{sT2}, s{sT2}, 0x8000')

def u_write():
    P(f's_mul_i32 s14, s{sW}, {U_CH}\ns_add_u32 s14, s14, {L_U}\nv_lshl_add_u32 v7, v1, 3, s14')
    for i in range(8):
        P(f'v_mov_b32 v{57+4*i}, v{58+4*i}\nds_write_b64 v7, {vr(56+4*i,2)} offset:{512*i}')

def front():
    lh, lj, lp, lok = L('h'), L('j'), L('p'), L('ok')
    P(f's_cmp_ge_u32 s{sW}, 2')
    P.save('p0'); n0 = nstamp[0]
    P(f's_cbranch_scc1 {lh}')
    P(f'''s_lshl_b32 s14, s{sLB}, 14
s_lshl_b32 s15, s{sW}, 13
s_add_u32 s14, s14, s15
s_add_u32 s{sT0}, s14, {WS_KVT}
s_add_u32 s{sT3}, s{sT0}, 4096
v_lshlrev_b32 v7, 7, v1''')
    P(f'buffer_load_dword {JNK}, v7, {srd(R_WS)}, s{sT0} offen sc1{KNT}', discard=True)
    P(f'global_load_dword {JNK}, v2, s[12:13]', discard=True)
    P(f'''v_mov_b32 v56, 0
v_mov_b32 v57, 0
s_mul_i32 s14, s{sW}, {U_CH}
s_add_u32 s14, s14, {L_U + 4096}
v_lshl_add_u32 v7, v1, 3, s14
ds_write_b64 v7, v[56:57]''')
    P.add(mksrd(R_W1, 30, 512 * 2752)); P.add(mksrd(R_W2, 34, 1376 * 1024))
    setup_common(); tags()
    kv_phase()
    P(f's_mov_b32 s{sSPIN}, 0\ns_mov_b32 s{sLAY}, 0')
    P.label(lp)
    for i in range(8):
        P(f'buffer_load_dwordx4 {vr(56+4*i,4)}, v{vL16}, {srd(R_WS)}, s{sT0 if i < 4 else sT3} offen offset:{1024*(i&3)} sc1')
    P('s_waitcnt vmcnt(0)\nv_min_u32 v2, v57, v59\nv_max_u32 v3, v57, v59')
    for i in range(1, 8):
        P(f'v_min3_u32 v2, v2, v{57+4*i}, v{59+4*i}\nv_max3_u32 v3, v3, v{57+4*i}, v{59+4*i}')
    P(f'''v_xor_b32 v2, s{sTAG0}, v2
v_xor_b32 v3, s{sTAG0}, v3
v_or_b32 v2, v2, v3
v_cmp_ne_u32 vcc, 0, v2
s_cbranch_vccz {lok}
s_add_u32 s{sSPIN}, s{sSPIN}, 1
s_cmp_lt_u32 s{sSPIN}, {S0_TMO}
s_cbranch_scc1 {lp}
s_mov_b32 s{sLAY}, 1''')
    P.label(lok)
    stamp('s0 seen')
    u_write()
    P(f'''v_mov_b32 v2, {L_TB + 8448}
v_lshl_add_u32 v3, s{sW}, 2, v2
v_mov_b32 v4, s{sLAY}
ds_write_b32 v3, v4''')
    P.save('pa')
    P(f's_branch {lj}')
    P.label(lh); P.restore('p0'); nstamp[0] = n0
    P(f'''s_lshl_b32 s14, s{sLB}, 13
s_lshl_b32 s15, s{sW}, 12
s_add_u32 s14, s14, s15
s_sub_u32 s14, s14, 0x2000
s_add_u32 s{R_H}, s24, s14
s_addc_u32 s{R_H+1}, s25, 0
s_mov_b32 s{R_H+2}, 4096
s_mov_b32 s{R_H+3}, 0x20000
v_add_u32 v7, -16, v{vL16}
v_add_u32 v8, 1008, v{vL16}''')
    P(f'global_load_dword {JNK}, v2, s[12:13]', discard=True)
    for i in range(4):
        lo = f'v7, {srd(R_H)}, 0 offen' if i == 0 else f'v8, {srd(R_H)}, 0 offen offset:{1024*(i-1)}'
        P(f'buffer_load_dwordx4 {vr(56+8*i,4)}, {lo}{NT}')
        P(f'buffer_load_dwordx4 {vr(60+8*i,4)}, v{vL16}, {srd(R_H)}, 0 offen offset:{1024*i}{NT}')
    P.add(mksrd(R_W1, 30, 512 * 2752)); P.add(mksrd(R_W2, 34, 1376 * 1024))
    setup_common(); tags()
    kv_phase()
    if WTOUCH == 0: w_touch_early()
    P(f'''s_sub_u32 s14, s{sW}, 2
s_mul_i32 s14, s14, {HC_CH}
s_add_u32 s14, s14, {L_HC + 16}
v_add_u32 v2, s14, v{vL16}
v_and_b32 v3, 7, v1
v_mul_u32_u24 v3, {HC_CS}, v3
s_sub_u32 s14, s14, 16
v_add_u32 v3, s14, v3
v_mov_b32 v32, 0
v_mov_b32 v33, 0
v_mov_b32 v34, 0
v_mov_b32 v35, 0
ds_write_b128 v3, v[32:35]''')
    for i in range(4):
        d = 56 + 8 * i; e, g, f = (162, 168, 174) if i % 2 == 0 else (180, 186, 192)
        P(f'ds_write_b128 v2, {vr(d+2,4)} offset:{3*HC_CS + 1024*i}\nds_write_b128 v2, {vr(d+4,4)} offset:{7*HC_CS + 1024*i}')
        for k in range(6): P(f'v_alignbit_b32 v{e+k}, v{d+k+1}, v{d+k}, 16')
        P(f'ds_write_b128 v2, {vr(e,4)} offset:{1024*i}\nds_write_b128 v2, {vr(e+2,4)} offset:{4*HC_CS + 1024*i}')
        for k in range(6): P(f'v_alignbit_b32 v{g+k}, v{d+k+2}, v{d+k+1}, 16')
        P(f'ds_write_b128 v2, {vr(g,4)} offset:{2*HC_CS + 1024*i}\nds_write_b128 v2, {vr(g+2,4)} offset:{6*HC_CS + 1024*i}')
        for k in range(6): P(f'v_mov_b32 v{f+k}, v{d+k+1}')
        P(f'ds_write_b128 v2, {vr(f,4)} offset:{1*HC_CS + 1024*i}\nds_write_b128 v2, {vr(f+2,4)} offset:{5*HC_CS + 1024*i}')
    stamp('h built')
    P(f'v_mov_b32 v2, {L_TB + 8448}')
    P.save('pb')
    P.label(lj); P.merge(['pa', 'pb'])
    P(f'''v_and_b32 v36, 7, v1
v_mul_u32_u24 v34, {HC_CS}, v36
v_bfe_u32 v36, v1, 3, 1
v_lshrrev_b32 v37, 4, v1
v_add_u32 v36, v36, v37
v_lshl_add_u32 v34, v36, 4, v34
s_lshr_b32 s14, s{sW}, 1
s_and_b32 s15, s{sW}, 1
s_lshl_b32 s15, s15, 8
s_mul_i32 s12, s14, {HC_CH}
s_add_u32 s12, s12, s15
v_add_u32 v34, s12, v34
s_mul_i32 s12, s14, {U_CH}
s_add_u32 s12, s12, s15
s_add_u32 s12, s12, {L_U + 480}
v_lshlrev_b32 v35, 4, v37
v_and_b32 v36, 15, v1
v_lshlrev_b32 v36, 5, v36
v_sub_u32 v35, v35, v36
v_add_u32 v35, s12, v35''')
    barrier()
    P(f'ds_read_b64 v[4:5], v2')
    P.add(conv_reads(0))
    P(f'''v_or_b32 v4, v4, v5
v_readfirstlane_b32 s14, v4
s_cmp_lg_u32 s14, 0''')
    P('s_cbranch_scc1 Lslow', tag='soft')

def s0_slow():
    P('s_waitcnt lgkmcnt(0)\ns_barrier')
    kvt_stores(' sc0 sc1')
    lp, lok, lw = L('sp'), L('sok'), L('sw')
    P(f's_cmp_ge_u32 s{sW}, 2\ns_cbranch_scc1 {lw}\ns_mov_b32 s{sSPIN}, 0')
    P.label(lp)
    for i in range(8):
        P(f'buffer_load_dwordx4 {vr(56+4*i,4)}, v{vL16}, {srd(R_WS)}, s{sT0 if i < 4 else sT3} offen offset:{1024*(i&3)} sc0 sc1')
    P('s_waitcnt vmcnt(0)\nv_mov_b32 v2, 0')
    for i in range(8):
        P(f'v_xor_b32 v3, s{sTAG}, v{57+4*i}\nv_xor_b32 v4, s{sTAG}, v{59+4*i}\nv_or3_b32 v2, v2, v3, v4')
    P(f'''v_cmp_lt_u32 vcc, 7, v2
s_cbranch_vccz {lok}
s_add_u32 s{sSPIN}, s{sSPIN}, 1
s_cmp_lt_u32 s{sSPIN}, {SPIN}
s_cbranch_scc1 {lp}''')
    P.label(lok)
    u_write()
    P.label(lw)
    P('s_waitcnt vmcnt(0)')
    barrier()
    P.assume()
    P.add(conv_reads(0))

def w_issue(kind, s, base, off):
    it = parse(f's_mov_b32 s{sWO}, {s*32*2752 if kind == 1 else s*16384}\ns_add_u32 m0, s{base}, {off}')
    for i in range(3 if kind == 1 else 4):
        it.append(I(f'buffer_load_dwordx4 v{(vW1S if kind == 1 else vW2S)+i}, {srd(R_W1 if kind == 1 else R_W2)}, s{sWO} offen offset:{1024*i}{WNT} lds', tag=('w', kind, s)))
    return it
def w_read(kind, s, off, areg=None):
    it = [Ctl('waitvm', ('w', kind, s))]
    if kind == 1:
        for t in range(3):
            for h in range(2): it.append(I(f'ds_read_b64_tr_b16 {w1reg(t,s,h)}, v{vW1T} offset:{off + h*384 + 32*t}'))
    else:
        a = vW2T if areg is None else areg
        for T in range(4):
            for h in range(2): it.append(I(f'ds_read_b64_tr_b16 {w2reg(T,s,h)}, v{a+T} offset:{off + h*1024}'))
    return it
def rebase(dst, sbase):
    it = parse(f's_sub_u32 s{sWO}, s{sbase}, s{sST}')
    for T in range(4): it.append(I(f'v_add_u32 v{dst+T}, s{sWO}, v{vW2T+T}'))
    return it
LG0 = lambda: parse('s_waitcnt lgkmcnt(0)')

def conv_reads(rr):
    b = 64 * (rr & 1); it = []
    for a in range(8):
        it.append(I(f'ds_read_b128 {ar(b+4*a,4)}, v34 offset:{512*a+64*rr}'))
        it.append(I(f'ds_read_b128 {ar(b+32+4*a,4)}, v35 offset:{3584-512*a+64*rr}'))
    return it

def conv(slow):
    ACC = 2
    cc = ' sc0 sc1' if slow else ''
    xb = WS_XNS if slow else WS_KVT
    seen = set()
    def mf(rr):
        b = 64 * (rr & 1); out = []
        for s in range(8):
            for a in range(s + 1):
                for (aa, c2) in sorted({(a, s), (s, a)}):
                    if aa + c2 <= 7:
                        p = aa + c2
                        c = vr(ACC + 4 * p, 4) if p in seen else '0'
                        seen.add(p)
                        out.append(I(f'v_mfma_f32_16x16x32_bf16 {vr(ACC+4*p,4)}, {ar(b+4*aa,4)}, {ar(b+32+4*c2,4)}, {c}'))
        return out
    misc = parse(f'''s_add_u32 s{sXO}, s{sXO}, {xb}
s_add_u32 s{sXI0}, s{sXI0}, {xb}
s_add_u32 s{sXI1}, s{sXI0}, 0x4000
v_mov_b32 v40, -1
v_mov_b32 v41, -1
v_mov_b32 v42, -1
v_mov_b32 v43, -1
s_lshl_b32 s14, s{sLB}, 13
s_lshl_b32 s15, s{sW}, 11
s_add_u32 s14, s14, s15
s_add_u32 s14, s14, {WS_Y}''')
    misc += parse(f'buffer_store_dwordx4 v[40:43], v{vL16}, {srd(R_WS)}, s14 offen sc0 sc1\nbuffer_store_dwordx4 v[40:43], v{vL16}, {srd(R_WS)}, s14 offen offset:1024 sc0 sc1', tag='xclr')
    misc += parse(f's_mov_b32 s14, s{sXO}')
    for i in range(4):
        misc.append(I(f'buffer_store_dwordx4 v[40:43], v{vL16}, {srd(R_WS)}, s14 offen{cc}', tag='xclr'))
        if i < 3: misc += parse('s_add_u32 s14, s14, 0x1000')
    misc += mksrd(R_Q, 16, 0x200000)
    misc += parse(f'''s_lshl_b32 s14, s{sLB}, 13
s_lshl_b32 s15, s{sW}, 10
s_add_u32 s14, s14, s15
s_add_u32 s15, s14, 0x1000
buffer_load_dwordx4 {vr(vX_[0],4)}, v{vL16}, {srd(R_Q)}, s14 offen{NT}
buffer_load_dwordx4 {vr(vX_[1],4)}, v{vL16}, {srd(R_Q)}, s15 offen{NT}''')
    misc += mksrd(R_T, 36, 1024)
    misc += parse(f'buffer_load_dwordx4 {vr(vB2,4)}, v{vL16}, {srd(R_T)}, 0 offen')
    misc += mksrd(R_K, 32, 2752)
    misc += parse(f'''s_mul_i32 s14, s{sJ}, 352
s_mul_i32 s15, s{sW}, 96
s_add_u32 s14, s14, s15
v_lshrrev_b32 v44, 4, v1
v_lshl_add_u32 v44, v44, 3, s14''')
    for t in range(3):
        misc += parse(f'buffer_load_dwordx2 {vr(vB1+4*t+2,2)}, v44, {srd(R_K)}, 0 offen offset:{32*t}')
    misc += mksrd(R_V, 26, 1024)
    misc += parse(f's_lshl_b32 s14, s{sLB}, 2\nbuffer_load_dword v45, off, {srd(R_V)}, s14')
    wi = []
    for s in range(5): wi += w_issue(1, s, sST, 3072 * s)
    pre = parse(f'''s_lshl_b32 s14, s{sLB}, 4
s_lshl_b32 s15, s{sW}, 2
s_add_u32 s14, s14, s15
s_add_u32 s14, s14, {WS_PRE}''') + [Ctl('waitvm', 'xclr')] + parse(f'buffer_store_dword v{vTAG}, off, {srd(R_WS)}, s14 sc0 sc1')
    epi = parse(f'''v_and_b32 v36, 15, v1
v_lshlrev_b32 v36, 6, v36
v_lshrrev_b32 v37, 4, v1
v_lshl_add_u32 v36, v37, 4, v36
s_lshl_b32 s14, s{sW}, 13
v_add_u32 v36, s14, v36
v_lshlrev_b32 v37, 4, v0
v_lshlrev_b32 v38, 3, v0
v_sub_u32 v38, {L_U + 4088 - 2048}, v38''')
    w2 = []; w3 = []
    if WCONV:
        for s in range(3): w2 += w_read(1, s, 3072 * s)
        w2 += LG0()
        for s in range(5, 8): w2 += w_issue(1, s, sST, 3072 * (s - 5))
        for s in range(3, 5): w3 += w_read(1, s, 3072 * s)
        w3 += LG0()
        for s in range(8, 10): w3 += w_issue(1, s, sST, 3072 * (s - 5))
    t1 = w_touch(R_W1) if WTOUCH == 1 else []
    t2 = w_touch(R_W2)
    fills = [conv_reads(1) + misc, conv_reads(2) + t1 + (t2 if W2T == 0 else []) + wi, conv_reads(3) + (t2 if W2T == 1 else []), epi + pre + w2 + w3]
    left = []
    for rr in range(4):
        items, left = weave(mf(rr), 2, left + fills[rr])
        P.add(items)
    P.add(left)

def conv_epilogue():
    ACC = 2
    barrier()
    for p in range(8): P(f'ds_write_b128 v36, {vr(ACC+4*p,4)} offset:{1024*p}')
    P(f'v_readfirstlane_b32 s{sC0}, v45')
    P(f's_lshl_b32 s14, s{sLB}, 13\ns_add_u32 s14, s14, {WS_Y}\ns_add_u32 s15, s14, 0x1000')
    P(f's_lshl_b32 s{sC1}, s{sC0}, 16\ns_and_b32 s{sC0}, s{sC0}, 0xffff0000')
    barrier()
    for i in range(2):
        b = 2 + 24 * i if i == 0 else 56
        P(f'ds_read_b64 {vr(b+16,2)}, v38 offset:{2048-2048*i}')
        P(f'ds_read_b64 {vr(b+18,2)}, v38 offset:{2048-2048*i+U_CH}')
        for k in range(4): P(f'ds_read_b128 {vr(b+4*k,4)}, v37 offset:{8192*k+4096*i}')
    for i in range(2):
        b = 2 if i == 0 else 56
        t = 28
        for ch in range(2):
            a = b + 8 * ch; u = b + 16 + 2 * ch; sd = sC1 if ch == 0 else sC0
            P(f'''v_and_b32 v{t}, s{sHIM}, v{u+1}
v_lshlrev_b32 v{t+1}, 16, v{u+1}
v_and_b32 v{t+2}, s{sHIM}, v{u}
v_lshlrev_b32 v{t+3}, 16, v{u}
v_pk_add_f32 {vr(a,2)}, {vr(a,2)}, {vr(a+4,2)}
v_pk_add_f32 {vr(a+2,2)}, {vr(a+2,2)}, {vr(a+6,2)}''')
            for k in range(4): P(f'v_fmac_f32 v{a+k}, s{sd}, v{t+k}')
        for k in range(4): P(f'v_cvt_pk_bf16_f32 v{b+20+k}, v{b+k}, v{b+8+k}')
        for k in range(4): P(f'v_min_u32 v{b+20+k}, -2, v{b+20+k}')
        P(f'buffer_store_dwordx4 {vr(b+20,4)}, v37, {srd(R_WS)}, s{14+i} offen sc0 sc1', tag='y')

def unpack8(dst, src):
    it = []
    for k in range(4):
        it += parse(f'v_lshlrev_b32 v{dst+2*k}, 16, v{src+k}\nv_and_b32 v{dst+2*k+1}, s{sHIM}, v{src+k}')
    return it
def stats(x, t):
    it = parse(f'''v_pk_add_f32 {vr(t,2)}, {vr(x,2)}, {vr(x+2,2)}
v_pk_mul_f32 {vr(t+2,2)}, {vr(x,2)}, {vr(x,2)}
v_pk_add_f32 {vr(t+4,2)}, {vr(x+4,2)}, {vr(x+6,2)}
v_pk_fma_f32 {vr(t+2,2)}, {vr(x+2,2)}, {vr(x+2,2)}, {vr(t+2,2)}
v_pk_add_f32 {vr(t,2)}, {vr(t,2)}, {vr(t+4,2)}
v_pk_fma_f32 {vr(t+2,2)}, {vr(x+4,2)}, {vr(x+4,2)}, {vr(t+2,2)}
v_add_f32 v{t}, v{t}, v{t+1}
v_pk_fma_f32 {vr(t+2,2)}, {vr(x+6,2)}, {vr(x+6,2)}, {vr(t+2,2)}
v_add_f32 v{t+1}, v{t+2}, v{t+3}''')
    for mod in ('quad_perm:[1,0,3,2]', 'quad_perm:[2,3,0,1]', 'row_half_mirror', 'row_mirror'):
        it += parse(f'v_add_f32_dpp v{t}, v{t}, v{t} {mod} row_mask:0xf bank_mask:0xf\nv_add_f32_dpp v{t+1}, v{t+1}, v{t+1} {mod} row_mask:0xf bank_mask:0xf')
    for perm in ('v_permlane16_swap_b32', 'v_permlane32_swap_b32'):
        it += parse(f'''v_mov_b32 v{t+2}, v{t}
v_mov_b32 v{t+3}, v{t+1}
{perm} v{t}, v{t+2}
{perm} v{t+1}, v{t+3}
v_pk_add_f32 {vr(t,2)}, {vr(t,2)}, {vr(t+2,2)}''')
    it += parse(f'''v_mul_f32 v{t}, s{sSELLO}, v{t}
v_mul_f32 v{t+2}, v{t}, v{t}
v_fma_f32 v{t+1}, v{t+1}, s{sSELLO}, -v{t+2}
v_max_f32 v{t+1}, 0, v{t+1}
v_add_f32 v{t+1}, 0x3727c5ac, v{t+1}
v_rsq_f32 v{t+1}, v{t+1}
v_mul_f32 v{t}, v{t}, v{t+1}''')
    return it
def gate(X, x, st):
    yy = x + 16; q = x + 24
    it = unpack8(yy, vY_[X])
    for k in range(8): it += parse(f'v_fma_f32 v{q+k}, v{x+k}, v{st+1}, -v{st}')
    for k in range(0, 8, 2): it += parse(f'v_pk_fma_f32 {vr(x+k,2)}, {vr(q+k,2)}, {vr(yy+k,2)}, {vr(x+k,2)}')
    for k in range(4): it += parse(f'v_cvt_pk_bf16_f32 v{vX_[X]+k}, v{x+2*k}, v{x+2*k+1}')
    it += unpack8(x, vX_[X])
    return it
def norm_pub(X, x, layer, slow, sreg):
    t = x + 8; yy = x + 16; q = x + 24
    it = stats(x, t)
    for k in range(8): it += parse(f'v_fma_f32 v{q+k}, v{x+k}, v{t+1}, -v{t}')
    for k in range(4): it += parse(f'v_cvt_pk_bf16_f32 v{yy+k}, v{q+2*k}, v{q+2*k+1}')
    for k in range(4): it += parse(f'v_min_u32 v{yy+k}, -2, v{yy+k}')
    it += parse(f's_add_u32 s{sreg}, s{sXO}, {layer*8192 + X*4096}')
    it += parse(f'buffer_store_dwordx4 {vr(yy,4)}, v{vL16}, {srd(R_WS)}, s{sreg} offen{" sc0 sc1" if slow else ""}')
    return it
def zip2(a, b):
    out = []
    for i in range(max(len(a), len(b))):
        if i < len(a): out.append(a[i])
        if i < len(b): out.append(b[i])
    return out

def xn_dma(X, slow):
    cc = ' sc0 sc1' if slow else ' sc1'
    it = parse(f's_add_u32 s{sT0}, s{sXI0}, {X*4096}\ns_add_u32 s{sT1}, s{sXI1}, {X*4096}')
    for i in range(8):
        it += parse(f's_add_u32 m0, s{sXL}, {L_XN + (32*X + i)*XN_RS - 1024*(i&3)}')
        it.append(I(f'buffer_load_dwordx4 v{vL16}, {srd(R_WS)}, s{sT0 if i < 4 else sT1} offen offset:{1024*(i&3)}{cc} lds', tag='xn'))
    return it
def xn_check(X, t, n):
    it = parse(f'v_add_u32 v{t+1}, s{sXL}, v{vL16}')
    first = True
    for i0 in range(0, 8, n):
        for i in range(n): it += parse(f'ds_read_b128 {vr(t+2+4*i,4)}, v{t+1} offset:{L_XN + (32*X+i0+i)*XN_RS}')
        for i in range(n):
            r = t + 2 + 4 * i
            if first: it += parse(f'v_max_u32 v{t}, v{r}, v{r+1}'); first = False
            else: it += parse(f'v_max3_u32 v{t}, v{t}, v{r}, v{r+1}')
            it += parse(f'v_max3_u32 v{t}, v{t}, v{r+2}, v{r+3}')
    it += parse(f'v_cmp_eq_u32 vcc, -1, v{t}')
    return it
def xn_verify(X, slow, t, n):
    it = [Ctl('waitvm', 'xn')] + xn_check(X, t, n)
    it += retry(None, xn_dma(X, slow) + parse('s_waitcnt vmcnt(0)') + xn_check(X, t, n), '')
    return it

def s1_phase(slow):
    pld = f'''buffer_load_dword v48, v46, {srd(R_WS)}, s12 offen sc1
buffer_load_dword v49, v46, {srd(R_WS)}, s12 offen offset:2048 sc1'''
    P(f'''v_lshrrev_b32 v46, 1, v0
v_lshlrev_b32 v46, 4, v46
s_lshr_b32 s12, s{sLB}, 6
s_lshl_b32 s12, s12, 2
s_add_u32 s12, s12, {WS_PRE}''')
    P(pld)
    if WCONV:
        for s in range(5, 10): P.add(w_read(1, s, 3072 * (s % 5)))
    else:
        for s in range(0, 5): P.add(w_read(1, s, 3072 * (s % 5)))
        P.add(LG0())
        for s in range(5, 10): P.add(w_issue(1, s, sST, 3072 * (s % 5)))
        for s in range(5, 10): P.add(w_read(1, s, 3072 * (s % 5)))
    P.add(LG0())
    nxt = list(range(10, 15))
    for s in nxt: P.add(w_issue(1, s, sST, 3072 * (s % 5)))
    for s in range(2): P.add(w_issue(2, s, sE, 4096 * s))
    stamp('P5 issued')
    chk = f'''v_xor_b32 v48, s{sTAG}, v48
v_xor_b32 v49, s{sTAG}, v49
v_or_b32 v48, v48, v49
v_cmp_ne_u32 vcc, 0, v48'''
    P(chk)
    P.add(retry(None, parse(pld + '\ns_waitcnt vmcnt(0)'), chk))
    P(f's_mov_b32 s{sSELLO}, 0x3b000000')
    a = unpack8(2, vX_[0]) + stats(2, 10); b = unpack8(34, vX_[1]) + stats(34, 42)
    P.add(zip2(a, b))
    P('v_mov_b32 v70, v10\nv_mov_b32 v71, v11\nv_mov_b32 v72, v42\nv_mov_b32 v73, v43')
    for t in range(3):
        b = vB1 + 4 * t
        P(f'v_lshlrev_b32 v{b}, 16, v{b+2}\nv_and_b32 v{b+1}, s{sHIM}, v{b+2}\nv_lshlrev_b32 v{b+2}, 16, v{b+3}\nv_and_b32 v{b+3}, s{sHIM}, v{b+3}')
    P.add(mksrd(R_Q, 38, 0x200000))
    P(f's_mov_b32 s{sC1}, {f2h(GC1)}')
    P(f'''v_lshrrev_b32 v75, 1, v0
v_lshlrev_b32 v74, 13, v75
v_and_b32 v84, 1, v0
v_lshl_add_u32 v74, v84, 4, v74
s_lshl_b32 s14, s{sLB}, 5
s_add_u32 s14, s14, {WS_Y}
s_add_u32 s15, s14, 0x100000
v_mul_u32_u24 v84, {4*YT_RS}, v84
v_lshl_add_u32 v84, v75, 2, v84
v_add_u32 v84, {L_YT}, v84''')
    P.waitvm('y')
    stamp('y acked')
    ld = f'''buffer_load_dwordx4 v[76:79], v74, {srd(R_WS)}, s14 offen sc1
buffer_load_dwordx4 v[80:83], v74, {srd(R_WS)}, s15 offen sc1'''
    chk = '''v_max3_u32 v75, v76, v77, v78
v_max3_u32 v85, v79, v80, v81
v_max3_u32 v75, v75, v82, v83
v_max_u32 v75, v75, v85
v_cmp_eq_u32 vcc, -1, v75'''
    P(ld)
    for s in nxt: P.add(w_read(1, s, 3072 * (s % 5)))
    P.add(rebase(66, sE))
    for s in range(2): P.add(w_read(2, s, 4096 * s, 66))
    P(chk)
    P.add(retry(None, parse(ld + '\ns_waitcnt vmcnt(0)'), chk))
    stamp('y seen')
    for i in range(2):
        for k in range(4): P(f'ds_write_b32 v84, v{76+4*i+k} offset:{k*YT_RS + 512*i}')
    P(f's_mul_i32 s14, s{sW}, {YT_RS}\ns_add_u32 s14, s14, {L_YT}\nv_add_u32 v84, s14, v{vL16}')
    barrier()
    P(f'ds_read_b128 {vr(vY_[0],4)}, v84\nds_read_b128 {vr(vY_[1],4)}, v84 offset:{4*YT_RS}')
    if W2T == 2: P.add(w_touch(R_W2))
    P.add(w_issue(1, 15, sST, 0))
    for s in range(2, 5): P.add(w_issue(2, s, sST, 3072 + 4096 * (s - 2)))
    for s in range(5, 7): P.add(w_issue(2, s, sE, 4096 * (s - 5)))
    P.add(w_issue(2, 10, sCW, 0))
    stamp('P6 issued')
    a = gate(0, 2, 70) + norm_pub(0, 2, 0, slow, 14); b = gate(1, 34, 72) + norm_pub(1, 34, 0, slow, 15)
    P.add(zip2(a, b))
    stamp('xn1 published')
    P.add(xn_dma(0, slow))
    P.add(w_read(1, 15, 0))
    for s in range(2, 5): P.add(w_read(2, s, 3072 + 4096 * (s - 2)))
    for s in range(5, 7): P.add(w_read(2, s, 4096 * (s - 5), 66))
    P.add(rebase(66, sCW))
    P.add(w_read(2, 10, 0, 66))
    P.add(xn_verify(0, slow, 8, 8))
    P.add(LG0())
    P(f's_mov_b32 s{sLAY}, 0')

ACCS = [2, 14, 26, 38]; RING = 50; GT = 66
def gelu(qd):
    X, mt = qd >> 1, qd & 1
    it = []
    for t in range(3):
        a = ACCS[qd] + 4 * t; T = GT + 4 * ((qd * 3 + t) & 1)
        for k in range(4): it += parse(f'v_mul_f32 v{T+k}, v{a+k}, v{a+k}')
        for k in range(4): it += parse(f'v_fma_f32 v{T+k}, v{T+k}, s{sC1}, v{vGC0}')
        for k in range(4): it += parse(f'v_mul_f32 v{T+k}, v{T+k}, v{a+k}')
        for k in range(4): it += parse(f'v_exp_f32 v{T+k}, v{T+k}')
        for k in range(4): it += parse(f'v_add_f32 v{T+k}, 1.0, v{T+k}')
        for k in range(4): it += parse(f'v_rcp_f32 v{T+k}, v{T+k}')
        for k in range(4): it += parse(f'v_mul_f32 v{T+k}, v{T+k}, v{a+k}')
        it += parse(f'v_cvt_pk_bf16_f32 v{T}, v{T}, v{T+1}\nv_cvt_pk_bf16_f32 v{T+1}, v{T+2}, v{T+3}')
        it += parse(f'ds_write_b64 v{vHW}, {vr(T,2)} offset:{X*H_HALF + mt*16*H_RS + 32*t}')
    return it
def xfrag(g):
    return I(f'ds_read_b128 {vr(RING+4*(g&3),4)}, v{vXF} offset:{L_XN + (g>>4)*16*XN_RS + 64*(g&15)}')
def g1_main(qd):
    m = []
    for s in range(16):
        g = 16 * qd + s
        for t in range(3):
            acc = ACCS[qd] + 4 * t
            c = vr(vB1 + 4 * t, 4) if s == 0 else vr(acc, 4)
            m.append(I(f'v_mfma_f32_16x16x32_bf16 {vr(acc,4)}, {w1reg(t,s)}, {vr(RING+4*(g&3),4)}, {c}'))
    return m
G2ACC = [2, 50]; PK = [18, 22]
HRING = [[74, 78, 82, 88, 92, 96], [74, 78, 82, 26, 30, 34]]
def hreg(X, g): return HRING[X][g % 6]
def hfrag(X, g):
    return I(f'ds_read_b128 {vr(hreg(X,g),4)}, v{vHR} offset:{X*H_HALF + 32*(g%11)}')
def regset(a, n): return {('v', a + i) for i in range(n)}
def g2_main(X, T):
    acc = G2ACC[T & 1]; m = []
    for s in range(11):
        g = 11 * T + s
        m.append(I(f'v_mfma_f32_32x32x16_bf16 {vr(acc,16)}, {w2reg(T,s)}, {vr(hreg(X,g),4)}, {"0" if s == 0 else vr(acc,16)}'))
    return m
def g2_epi(X, T, slow):
    cc = ' sc0 sc1' if slow else ''
    acc = G2ACC[T & 1]; it = []
    for x in range(2):
        for k in range(4): it += parse(f'v_cvt_pk_bf16_f32 v{PK[x]+k}, v{acc+8*x+2*k}, v{acc+8*x+2*k+1}')
    for x in range(2):
        it += parse(f'v_permlane32_swap_b32 v{PK[x]}, v{PK[x]+2}\nv_permlane32_swap_b32 v{PK[x]+1}, v{PK[x]+3}')
    for x in range(2):
        it.append(I(f'buffer_store_dwordx4 {vr(PK[x],4)}, v{vPS}, {srd(R_WS)}, s{sT2 if X == 0 else sT3} offen offset:{(2*T+x)*128}{cc}', tag=('part', X)))
    return it
PLD = [26, 30, 34, 38, 42, 46, 66, 70]
def flag_store(X, slow):
    cc = ' sc0 sc1' if slow else ''
    return [Ctl('waitvm', ('part', X))] + parse(f's_lshl_b32 s14, s{sJ}, 2\ns_add_u32 s14, s14, s{sFL}') + \
        parse(f'buffer_store_dword v{vTAG}, off, {srd(R_WS)}, s14 offset:{512*X}{cc}')
def flag_load(X, slow, r):
    return parse(f'buffer_load_dword v{r}, v{vFLG}, {srd(R_WS)}, s{sFL} offen offset:{512*X}{" sc0 sc1" if slow else " sc1"}')
def flag_check_and_load(X, slow, r, regs):
    cc = ' sc0 sc1' if slow else ' sc1'
    chk = f'v_cmp_ne_u32 vcc, s{sTAG}, v{r}'
    it = parse(chk) + retry(None, flag_load(X, slow, r) + parse('s_waitcnt vmcnt(0)'), chk)
    it += parse(f's_add_u32 s14, s{sPL0}, {X*0x40000}\ns_add_u32 s15, s{sPL1}, {X*0x40000}')
    for lp in range(4):
        for ph in range(2):
            it += parse(f'buffer_load_dwordx4 {vr(regs[2*lp+ph],4)}, v{vPL}, {srd(R_WS)}, s{14+ph} offen offset:{256*lp}{cc}')
    return it
def reduce_mm(X, regs, d):
    red = 0 if X == 0 else L_RED1 - L_RED0
    it = []
    for st in range(2):
        for ph in range(2):
            for D in range(2):
                first = st == 0 and ph == 0
                it += parse(f'v_mfma_f32_16x16x32_bf16 {vr(d+4*D,4)}, {vr(vSEL+4*st,4)}, {vr(regs[2*(2*D+st)+ph],4)}, {"0" if first else vr(d+4*D,4)}')
    return it, parse(f'ds_write_b128 v{vRW}, {vr(d,4)} offset:{red}\nds_write_b128 v{vRW}, {vr(d+4,4)} offset:{red+256}')
def resid_pre(X):
    tb = 10 if X == 0 else 66
    it = unpack8(74, vX_[X]) + unpack8(tb, vB2)
    for k in range(0, 8, 2): it += parse(f'v_pk_add_f32 {vr(74+k,2)}, {vr(74+k,2)}, {vr(tb+k,2)}')
    return it

def once_block():
    le = L('ep')
    it = parse(f's_or_b32 s14, s2, s{sW}\ns_cmp_lg_u32 s14, 0') + [I(f's_cbranch_scc1 {le}', tag='soft'), Ctl('save', 'e0')]
    it += parse(f'buffer_store_dword v{vTAG}, off, {srd(R_WS)}, 0 sc0 sc1') + [Label(le, True), Ctl('restore', 'e0')]
    for x in it[3:]: x.cost = 0
    for s in range(7, 10): it += w_issue(2, s, sST, 4096 * (s - 7))
    it += parse('v_and_b32 v85, 3, v1\nv_lshlrev_b32 v85, 9, v85')
    it += parse(f'buffer_load_dword v86, v85, {srd(R_WS)}, s{sFL} offen sc1', discard=True)
    if PMODE == 0:
        it += parse(f'''v_lshrrev_b32 v84, 3, v1
v_lshlrev_b32 v84, 12, v84
v_and_b32 v85, 7, v1
v_lshl_add_u32 v84, v85, 7, v84
s_add_u32 s14, s{sPL0}, 0x40000''')
        it += parse(f'''buffer_load_dword v86, v84, {srd(R_WS)}, s{sPL0} offen sc1{PNT}
buffer_load_dword v86, v84, {srd(R_WS)}, s14 offen sc1{PNT}''', discard=True)
    return it

def sel_items():
    it = parse(f'v_and_b32 v38, 15, v1\nv_and_b32 v39, 1, v1\nv_lshlrev_b32 v39, 4, v39\nv_mov_b32 v40, 0x3f80\nv_lshlrev_b32 v39, v39, v40\nv_lshrrev_b32 v38, 1, v38')
    for k in range(0, 8, 2):
        it += parse(f'v_cmp_eq_u32 vcc, {k}, v38\nv_cmp_eq_u32 s[92:93], {k+1}, v38\nv_mov_b32 v41, 0\nv_cndmask_b32 v{vSEL+k}, 0, v39, vcc\nv_cndmask_b32 v{vSEL+k+1}, 0, v39, s[92:93]')
    return it

def ffn(slow, layer):
    wt = slow or (layer == 0 and PMODE == 2)
    P('s_barrier')
    stamp('loop top' + str(layer))
    P.add([xfrag(0), xfrag(1), xfrag(2)])
    P(f's_mov_b32 s{sT2}, s{sPS}\ns_add_u32 s{sT3}, s{sPS}, 0x40000')
    left = []
    for qd in range(4):
        pin = {3 * s: [xfrag(16 * qd + s + 3)] for s in range(16) if 16 * qd + s + 3 < 64}
        if qd == 0:
            fill = xn_dma(1, slow); st = 24
        elif qd == 1:
            g0 = gelu(0)
            fill = left + g0[:XVPOS] + xn_verify(1, slow, 74, 2) + parse('s_barrier') + g0[XVPOS:]; st = 2
        elif qd == 2:
            fill = (once_block() if layer == 0 else []) + left + gelu(1); st = 0
        else:
            n01 = len(left)
            fill = left + gelu(2); st = 0
        items, left = weave(g1_main(qd), 2, fill, pin, st)
        if FINE: stamp('q%d start' % qd)
        if qd == 1:
            ib = [k for k, i in enumerate(items) if i.kind == 'barrier']
            assert ib and ib[0] < items.index(pin[39][0]), 'xn(B) barrier too late'
        P.add(items)
    g2set = set(map(id, fill[n01:]))
    P.add([i for i in left if id(i) not in g2set])
    gl = [i for i in left if id(i) in g2set] + gelu(3)
    print('  gelu(A) left after G1:', sum(i.cost for i in left if id(i) not in g2set), ' gelu(B) for G2A:', sum(i.cost for i in gl))
    if layer == 0:
        for s in range(7, 10): P.add(w_read(2, s, 4096 * (s - 7)))
    barrier()
    stamp('g1 done' + str(layer))
    for X in range(2):
        P.add([hfrag(X, g) for g in range(5)])
        if X == 0:
            P.add(gl[:24]); gl = gl[24:]
        else:
            P.add(g2_epi(0, 3, wt))
        left = []
        per = sum(i.cost for i in gl) // 4 + 1
        for T in range(4):
            pin = {s: [hfrag(X, 11 * T + s + 5)] for s in range(11) if 11 * T + s + 5 < 44}
            pre = {s: [Ctl('need', regset(hreg(X, 11 * T + s + 1), 4))] for s in range(11) if (11 * T + s) % 2 == 0 and 11 * T + s + 1 < 44}
            for v in pre.values(): v[0].cost = 1
            epi = g2_epi(X, T - 1, wt) if T > 0 else []
            if X == 0:
                fill = left[:10] + epi + left[10:] if T > 0 else gl; st = 0
            else:
                fill = left + epi; st = 2
                if T == 0: fill = fill + sel_items()
                if T == 1: fill = fill + flag_store(0, slow)
                if T == 2: fill = fill + flag_load(0, slow, 87)
            items, left = weave(g2_main(X, T), 6, fill, pin, st, pre)
            assert not any(i.kind == 'perm' for i in left)
            P.add(items)
        print('  left after G2', X, sum(i.cost for i in left))
        P.add(left)
        if X == 0:
            barrier()
            stamp('g2a done' + str(layer))
    P.add(flag_check_and_load(0, slow, 87, PLD))
    P.add(g2_epi(1, 3, wt))
    stamp('g2b done' + str(layer))
    PLB = [34, 38, 42, 46, 50, 54, 58, 62]
    if True:
        mm, wr = reduce_mm(0, PLD, 2)
        P.add(resid_pre(0)); P.add(mm); P.add(flag_store(1, slow)); P.add(wr)
        barrier()
        stamp('redA')
        P.add(parse(f'ds_read_b128 v[2:5], v{vRR}\nds_read_b128 v[6:9], v{vRR} offset:16'))
        for k in range(0, 8, 2): P(f'v_pk_add_f32 {vr(2+k,2)}, {vr(2+k,2)}, {vr(74+k,2)}')
        for k in range(4): P(f'v_cvt_pk_bf16_f32 v{vX_[0]+k}, v{2+2*k}, v{3+2*k}')
        if layer == 0:
            a = unpack8(2, vX_[0]) + stats(2, 10) + gate(0, 2, 10)
            P.add(a[:30]); P.add(flag_load(1, slow, 87)); P.add(a[30:])
            b = norm_pub(0, 2, 1, slow, 14)
            P.add(b[:12]); P.add(flag_check_and_load(1, slow, 87, PLB)); P.add(b[12:])
        else:
            P(f's_lshl_b32 s{sT0}, s{sLB}, 13\ns_lshl_b32 s15, s{sW}, 10\ns_add_u32 s{sT0}, s{sT0}, s15')
            P(f'buffer_store_dwordx4 {vr(vX_[0],4)}, v{vL16}, {srd(R_Q)}, s{sT0} offen')
            P.add(flag_load(1, slow, 87))
            P.add(flag_check_and_load(1, slow, 87, PLB))
        stamp('A out')
        mm, wr = reduce_mm(1, PLB, 26)
        P.add(resid_pre(1)); P.add(mm); P.add(wr)
        barrier()
        stamp('redB')
        red = L_RED1 - L_RED0
        P.add(parse(f'ds_read_b128 v[2:5], v{vRR} offset:{red}\nds_read_b128 v[6:9], v{vRR} offset:{red+16}'))
        if layer == 0:
            P(f's_add_u32 s{sXI0}, s{sXI0}, 8192\ns_add_u32 s{sXI1}, s{sXI1}, 8192\ns_add_u32 s{sFL}, s{sFL}, 1024\ns_mov_b32 s{sLAY}, 1')
            P.add(xn_dma(0, slow))
        for k in range(0, 8, 2): P(f'v_pk_add_f32 {vr(2+k,2)}, {vr(2+k,2)}, {vr(74+k,2)}')
        for k in range(4): P(f'v_cvt_pk_bf16_f32 v{vX_[1]+k}, v{2+2*k}, v{3+2*k}')
        if layer == 0:
            P.add(unpack8(2, vX_[1]) + stats(2, 10) + gate(1, 2, 10) + norm_pub(1, 2, 1, slow, 14))
            stamp('B out')
            v = xn_verify(0, slow, 36, 8)
            P.add(v)
            P('s_waitcnt lgkmcnt(0)')
        else:
            P(f's_add_u32 s{sT0}, s{sT0}, 4096')
            P(f'buffer_store_dwordx4 {vr(vX_[1],4)}, v{vL16}, {srd(R_Q)}, s{sT0} offen')
            stamp('end')
            if DBG:
                ld = L('dbg')
                P(f's_or_b32 s14, s2, s{sW}\ns_cmp_lg_u32 s14, {opt("dbgwg", 0)}\ns_cbranch_scc1 {ld}')
                P.add(mksrd(R_T, 40, 256))
                P(f'v_readlane_b32 s14, v{vPROF}, 1\nv_lshlrev_b32 v2, 2, v1\nv_add_u32 v2, -8, v2\ns_nop 1\nv_subrev_u32 v3, s14, v{vPROF}')
                P(f'buffer_store_dword v3, v2, {srd(R_T)}, 0 offen')
                P.label(ld)
            elif PROF:
                P(f's_lshl_b32 s14, s2, 10\ns_lshl_b32 s15, s{sW}, 8\ns_add_u32 s14, s14, s15\ns_add_u32 s14, s14, {WS_PROF}\nv_lshlrev_b32 v2, 2, v1')
                P(f'buffer_store_dword v{vPROF}, v2, {srd(R_WS)}, s14 offen')
            P('s_endpgm')

def body(slow):
    stamp('conv start')
    conv(slow)
    stamp('conv done')
    conv_epilogue()
    stamp('y stored')
    s1_phase(slow)
    ffn(slow, 0); ffn(slow, 1)
    for blk in ool:
        P.assume(); P.add(blk)
    ool.clear()

prologue(); front()
P.save('fork')
n0 = nstamp[0]
body(False)
P.label('Lslow'); P.restore('fork'); nstamp[0] = n0
s0_slow()
body(True)
P.label('Lend'); P('s_endpgm')
text = P.render()
hdr = open('cdna_kernels/%s.s.ref' % NAME).read().split('\n')
top = [l for l in hdr if l.startswith(';') and '@launch' not in l and 'Override launch' not in l and 'grid=ceil' not in l]
out = '\n'.join(top) + f'''
; @launch grid=(256,1,1) block=(256,1,1) lds={LDS_BYTES}
.amdgcn_target "amdgcn-amd-amdhsa--gfx950"
.text
.globl {NAME}_kernel
.p2align 8
.type {NAME}_kernel,@function
{NAME}_kernel:
{text}
.section .rodata,"a"
.p2align 6
.amdhsa_kernel {NAME}_kernel
  .amdhsa_next_free_vgpr 512
  .amdhsa_next_free_sgpr 102
  .amdhsa_accum_offset 256
  .amdhsa_group_segment_fixed_size 0
  .amdhsa_kernarg_size 112
  .amdhsa_user_sgpr_count 2
  .amdhsa_user_sgpr_kernarg_segment_ptr 1
  .amdhsa_system_sgpr_workgroup_id_x 1
  .amdhsa_float_denorm_mode_32 3
.end_amdhsa_kernel
'''
dst = [a for a in sys.argv[1:] if not a.startswith('--')][0]
open(dst, 'w').write(out)
print('instrs', sum(1 for it in P.final if it.kind not in ('label', 'raw')), 'bytes', len(out), 'stamps', nstamp[0], 'nops', sum(1 for it in P.final if it.kind == 'nop'))
if PROF: open(dst + '.names', 'w').write('\n'.join('%d %s' % kv for kv in sorted(names.items())))
```
